```python
import torch

def _softmax(x, axis=-1):
    return torch.softmax(x, dim=axis)
def _gelu(x):
    return torch.nn.functional.gelu(x, approximate="tanh")
def _silu(x):
    return torch.nn.functional.silu(x)
def _sigmoid(x):
    return torch.sigmoid(x)
def _layernorm(x, axis=-1, eps=1e-5):
    m = x.mean(dim=axis, keepdim=True)
    v = x.var(dim=axis, keepdim=True, unbiased=False)
    return (x - m) / torch.sqrt(v + eps)
def _scatter_add(tgt, idx, src, axis=0):
    return tgt.clone().index_add_(axis, idx, src)
def _segment_sum(src, seg, n):
    out = torch.zeros((n,) + src.shape[1:], dtype=src.dtype)
    return out.index_add_(0, seg, src)
def _pad(x, pw):
    flat = tuple(v for pair in reversed(pw) for v in pair)
    return torch.nn.functional.pad(x, flat)

kernel_name = 'standalone__spectral_conv_chebnet__graph'

def setup_inputs():

    _w = (lambda a: (lambda t: t.to(torch.bfloat16) if t.is_floating_point() else t)(torch.as_tensor(a)))
    N, deg, D, K = 50000, 16, 64, 2
    E = N * deg
    src = (lambda lo, hi, *s: torch.randint(lo, hi, s))(0, N, E).to(torch.int64)
    dst = (lambda lo, hi, *s: torch.randint(lo, hi, s))(0, N, E).to(torch.int64)
    deg_cnt = torch.bincount(dst, minlength=N).to(float) + 1.0
    dis = (1.0 / (lambda _x: torch.sqrt(torch.as_tensor(_x)))(deg_cnt)).to(float)
    ew = -(dis[src] * dis[dst])
    return {
        "x": _w((lambda *s: torch.randn(*s, dtype=torch.bfloat16) * 0.05)(N, D)),
        "src": _w(src),
        "dst": _w(dst),
        "ew": _w(ew),
        "w": _w((lambda *s: torch.randn(*s, dtype=torch.bfloat16) * 0.05)(K, D, D) * 0.2),
    }

def reference(x, src, dst, ew, w):
    N, K = x.shape[0], w.shape[0]
    Ts = [x]
    if K > 1:
        Ts.append(_segment_sum(ew[:, None] * x[src], dst, N))
    for k in range(2, K):
        Tk = 2.0 * _segment_sum(ew[:, None] * Ts[-1][src], dst, N) - Ts[-2]
        Ts.append(Tk)
    T = torch.stack(Ts, 0)
    return torch.einsum('knd,kde->ne', T, w)
```

```python
N=50000; E=800000; G=256; C=3125; NB=196; NBUCK=256
REC_BYTES=E*8; TAB_OFF=REC_BYTES; WS_BYTES=TAB_OFF+NBUCK*G*4
M=-(-(1<<32)//NB)
assert all((d*M)>>32 == d//NB for d in range(NBUCK*NB))
CAP=4096
ACC=0; ACC_BYTES=NB*256
LIST=ACC_BYTES; SEG=LIST+CAP*8; TOT=SEG+G*16; LDSB=TOT+16
o=[]
def A(s): o.append(s)
hdr=open('standalone__spectral_conv_chebnet__graph.s.ref').read().split('\n')
for l in hdr[:9]: A(l)
A(f"; @launch kernel=cheb_a_kernel grid=({G},1,1) block=(1024,1,1) lds=2048")
A(f"; @launch kernel=cheb_b_kernel grid=({NBUCK},1,1) block=(1024,1,1) lds={LDSB}")
A('.amdgcn_target "amdgcn-amd-amdhsa--gfx950"\n.text')
def srd(d,p,n):
    A(f"s_mov_b32 s{d}, s{p}\ns_and_b32 s{d+1}, s{p+1}, 0xffff\ns_mov_b32 s{d+2}, {n}\ns_mov_b32 s{d+3}, 0x00020000")
def scan(v):
    for k in (1,2,4,8):
        A(f"s_nop 1\nv_add_u32_dpp v{v}, v{v}, v{v} row_shr:{k} row_mask:0xf bank_mask:0xf bound_ctrl:0")
    A(f"s_nop 1\nv_add_u32_dpp v{v}, v{v}, v{v} row_bcast:15 row_mask:0xa bank_mask:0xf")
    A(f"s_nop 1\nv_add_u32_dpp v{v}, v{v}, v{v} row_bcast:31 row_mask:0xc bank_mask:0xf\ns_nop 1")

A(""".globl cheb_a_kernel
.p2align 8
.type cheb_a_kernel,@function
cheb_a_kernel:""")
A(f"s_cmp_ge_u32 s2, {G}\ns_cbranch_scc1 LA_end")
A("""s_load_dwordx4 s[4:7], s[0:1], 8
s_load_dwordx2 s[24:25], s[0:1], 24
s_load_dwordx2 s[26:27], s[0:1], 56
s_waitcnt lgkmcnt(0)""")
srd(8,4,E*4); srd(12,6,E*4); srd(16,24,E*2); srd(20,26,WS_BYTES)
A(f"s_mul_i32 s3, s2, {C}\ns_mov_b32 s43, {C}")
A("""v_lshlrev_b32 v1, 2, v0
v_mov_b32 v2, 0
v_cmp_gt_u32 vcc, 256, v0
s_and_saveexec_b64 s[28:29], vcc
ds_write_b32 v1, v2
s_mov_b64 exec, s[28:29]""")
for k in range(4):
    A(f"v_add_u32 v3, {1024*k}, v0\nv_add_u32 v4, s3, v3\nv_lshlrev_b32 v5, 2, v4\nv_lshlrev_b32 v6, 1, v4")
    A(f"v_cmp_gt_u32 s[{30+2*k}:{31+2*k}], s43, v3\ns_mov_b64 exec, s[{30+2*k}:{31+2*k}]")
    A(f"buffer_load_dword v{10+k}, v5, s[12:15], 0 offen\nbuffer_load_dword v{14+k}, v5, s[8:11], 0 offen\nbuffer_load_ushort v{18+k}, v6, s[16:19], 0 offen")
    A("s_mov_b64 exec, -1")
A("s_waitcnt vmcnt(0) lgkmcnt(0)\ns_barrier\nv_mov_b32 v7, 1")
A(f"s_mov_b32 s40, {M}")
for k in range(4):
    A(f"s_mov_b64 exec, s[{30+2*k}:{31+2*k}]")
    A(f"v_mul_hi_u32 v{22+k}, s40, v{10+k}")
    A(f"v_lshlrev_b32 v8, 2, v{22+k}\nds_add_rtn_u32 v{26+k}, v8, v7")
    A(f"v_mul_u32_u24 v9, {NB}, v{22+k}\nv_sub_u32 v9, v{10+k}, v9\nv_lshl_or_b32 v{18+k}, v9, 16, v{18+k}")
A("s_mov_b64 exec, -1\ns_waitcnt lgkmcnt(0)\ns_barrier")
A("""v_cmp_gt_u32 vcc, 64, v0
s_and_saveexec_b64 s[28:29], vcc
s_cbranch_execz LA_skip
v_lshlrev_b32 v1, 4, v0
ds_read_b128 v[32:35], v1
s_waitcnt lgkmcnt(0)
v_add_u32 v36, v32, v33
v_add_u32 v37, v36, v34
v_add_u32 v38, v37, v35""")
scan(38)
A("""v_sub_u32 v40, v38, v37
v_sub_u32 v40, v40, v35
v_add_u32 v41, v40, v32
v_add_u32 v42, v40, v36
v_add_u32 v43, v40, v37
ds_write_b128 v1, v[40:43] offset:1024""")
A(f"s_lshl_b32 s41, s2, 2\ns_add_u32 s41, s41, {TAB_OFF}\nv_lshlrev_b32 v2, 12, v0")
for j in range(4):
    A(f"v_lshl_or_b32 v44, v{32+j}, 16, v{40+j}\nbuffer_store_dword v44, v2, s[20:23], s41 offen offset:{1024*j}")
A("""LA_skip:
s_mov_b64 exec, s[28:29]
s_waitcnt lgkmcnt(0)
s_barrier""")
A(f"s_mul_i32 s42, s2, {C*8}")
for k in range(4):
    A(f"s_mov_b64 exec, s[{30+2*k}:{31+2*k}]")
    A(f"v_lshlrev_b32 v8, 2, v{22+k}\nds_read_b32 v9, v8 offset:1024\ns_waitcnt lgkmcnt(0)")
    A(f"v_add_u32 v9, v9, v{26+k}\nv_lshlrev_b32 v9, 3, v9\nv_mov_b32 v46, v{14+k}\nv_mov_b32 v47, v{18+k}")
    A("buffer_store_dwordx2 v[46:47], v9, s[20:23], s42 offen\ns_nop 1")
A("LA_end:\ns_endpgm")

A(""".globl cheb_b_kernel
.p2align 8
.type cheb_b_kernel,@function
cheb_b_kernel:""")
A(f"s_cmp_ge_u32 s2, {NBUCK}\ns_cbranch_scc1 LB_end")
A("""s_load_dwordx2 s[4:5], s[0:1], 0
s_load_dwordx4 s[24:27], s[0:1], 32
s_load_dwordx2 s[6:7], s[0:1], 56
s_waitcnt lgkmcnt(0)""")
srd(8,4,N*128); srd(12,24,16384); srd(16,26,N*128); srd(20,6,WS_BYTES)
A("""v_lshrrev_b32 v1, 6, v0
s_nop 0
v_readfirstlane_b32 s3, v1
v_and_b32 v2, 63, v0""")
A("""s_cmp_ge_u32 s3, 14
s_cbranch_scc1 LB_noW
s_and_b32 s28, s3, 1
s_lshl_b32 s28, s28, 6
v_and_b32 v3, 31, v2
v_lshlrev_b32 v3, 1, v3
v_lshrrev_b32 v4, 5, v2
v_lshl_add_u32 v3, v4, 10, v3
v_add_u32 v3, s28, v3""")
for s in range(8):
    for j in range(8):
        off=(s*16+j)*128
        rg=(96 if j&1 else 64)+s*4+j//2
        so="0" if off<4096 else f"s{60+off//4096}"
        A(f"buffer_load_ushort v{rg}, v3, s[12:15], {so} offen offset:{off%4096}")
    if s==0: pass
o.insert(len(o)-64-0, "s_mov_b32 s61, 4096\ns_mov_b32 s62, 8192\ns_mov_b32 s63, 12288")
A("LB_noW:")
A("v_mov_b32 v4, 0\nv_mov_b32 v5, 0\nv_mov_b32 v6, 0\nv_mov_b32 v7, 0\nv_lshlrev_b32 v3, 4, v0")
for k in range(4):
    A(f"v_add_u32 v8, {16384*k}, v3\nv_cmp_gt_u32 vcc, {ACC_BYTES}, v8\ns_and_saveexec_b64 s[28:29], vcc\nds_write_b128 v8, v[4:7]\ns_mov_b64 exec, s[28:29]")
A(f"""s_cmp_lg_u32 s3, 0
s_cbranch_scc1 LB_notab
s_lshl_b32 s28, s2, 10
s_add_u32 s28, s28, {TAB_OFF}
v_lshlrev_b32 v3, 4, v2
buffer_load_dwordx4 v[8:11], v3, s[20:23], s28 offen
s_waitcnt vmcnt(0)""")
for j in range(4): A(f"v_lshrrev_b32 v{12+j}, 16, v{8+j}\nv_and_b32 v{8+j}, 0xffff, v{8+j}")
A("v_add_u32 v16, v12, v13\nv_add_u32 v17, v16, v14\nv_add_u32 v18, v17, v15")
scan(18)
A("""v_sub_u32 v20, v18, v17
v_sub_u32 v20, v20, v15
v_lshlrev_b32 v21, 6, v2""")
A(f"v_add_u32 v21, {SEG}, v21\nv_lshlrev_b32 v19, 2, v2\ns_mov_b32 s29, {C*8}")
pref=["v20",None,None,None]
for j in range(4):
    if j==1: A("v_add_u32 v24, v20, v12")
    elif j==2: A("v_add_u32 v24, v20, v16")
    elif j==3: A("v_add_u32 v24, v20, v17")
    else: A("v_mov_b32 v24, v20")
    A(f"v_mov_b32 v25, v{12+j}\nv_add_u32 v26, {j}, v19\nv_mul_lo_u32 v26, v26, s29\nv_lshl_add_u32 v26, v{8+j}, 3, v26\nv_mov_b32 v27, 0")
    A(f"ds_write_b128 v21, v[24:27] offset:{16*j}")
A(f"""v_readlane_b32 s30, v18, 63
v_mov_b32 v3, {TOT}
s_nop 1
v_mov_b32 v4, s30
ds_write_b32 v3, v4
LB_notab:
s_waitcnt lgkmcnt(0)
s_barrier
v_mov_b32 v3, {TOT}
ds_read_b32 v4, v3
s_waitcnt lgkmcnt(0)
v_readfirstlane_b32 s31, v4
s_mov_b32 s32, 0""")
A("""v_and_b32 v10, 31, v2
v_lshrrev_b32 v11, 5, v2
v_lshrrev_b32 v12, 4, v2
v_and_b32 v13, 15, v2
v_lshlrev_b32 v14, 3, v13
v_lshlrev_b32 v15, 2, v13""")
A("LB_batch:\ns_cmp_ge_u32 s32, s31\ns_cbranch_scc1 LB_mfma")
A(f"s_add_u32 s33, s32, {CAP}")
A("s_lshl_b32 s34, s3, 4\nv_add_u32 v16, s34, v11\nv_lshlrev_b32 v16, 4, v16")
A(f"v_add_u32 v16, {SEG}, v16")
for k in range(8):
    A(f"ds_read_b128 v[{20+4*k}:{23+4*k}], v16 offset:{32*k}")
A("s_waitcnt lgkmcnt(0)")
for k in range(8):
    p,c,sb=20+4*k,21+4*k,22+4*k
    A(f"v_mov_b32 v{23+4*k}, v10")
    A(f"LB_seg{k}:")
    A(f"v_cmp_lt_u32 vcc, v{23+4*k}, v{c}\ns_and_saveexec_b64 s[36:37], vcc\ns_cbranch_execz LB_sege{k}")
    A(f"v_lshl_add_u32 v17, v{23+4*k}, 3, v{sb}\nbuffer_load_dwordx2 v[18:19], v17, s[20:23], 0 offen")
    A(f"v_add_u32 v17, v{p}, v{23+4*k}\nv_cmp_le_u32 vcc, s32, v17\nv_cmp_gt_u32 s[38:39], s33, v17\ns_and_b64 vcc, vcc, s[38:39]\ns_and_b64 exec, exec, vcc")
    A(f"v_subrev_u32 v17, s32, v17\nv_lshlrev_b32 v17, 3, v17\ns_waitcnt vmcnt(0)\nds_write_b64 v17, v[18:19] offset:{LIST}")
    A(f"s_mov_b64 exec, s[36:37]\nv_add_u32 v{23+4*k}, 32, v{23+4*k}\ns_branch LB_seg{k}")
    A(f"LB_sege{k}:\ns_mov_b64 exec, s[36:37]")
A("s_waitcnt lgkmcnt(0)\ns_barrier")
A("s_min_u32 s35, s33, s31\ns_sub_u32 s35, s35, s32")
A("s_lshl_b32 s44, s3, 5")
A("LB_g:\ns_cmp_ge_u32 s44, s35\ns_cbranch_scc1 LB_gend")
A("v_add_u32 v16, s44, v12\nv_lshlrev_b32 v17, 3, v16")
for u in range(8): A(f"ds_read_b64 v[{20+2*u}:{21+2*u}], v17 offset:{LIST+32*u}")
A("s_waitcnt lgkmcnt(0)")
for u in range(8):
    A(f"v_add_u32 v18, {4*u}, v16\nv_cmp_gt_u32 s[{46+2*u}:{47+2*u}], s35, v18\nv_lshl_add_u32 v19, v{20+2*u}, 7, v14")
    A(f"s_mov_b64 exec, s[{46+2*u}:{47+2*u}]\nbuffer_load_dwordx2 v[{36+2*u}:{37+2*u}], v19, s[8:11], 0 offen\ns_mov_b64 exec, -1")
for u in range(8):
    r=21+2*u; d=36+2*u
    A(f"v_lshlrev_b32 v52, 16, v{r}\nv_lshrrev_b32 v53, 16, v{r}\nv_and_b32 v54, 1, v53\nv_lshlrev_b32 v54, 6, v54\nv_lshl_add_u32 v53, v53, 8, v15\nv_xor_b32 v53, v53, v54")
    A(f"s_waitcnt vmcnt({7-u})")
    A(f"v_lshlrev_b32 v55, 16, v{d}\nv_and_b32 v56, 0xffff0000, v{d}\nv_lshlrev_b32 v57, 16, v{d+1}\nv_and_b32 v58, 0xffff0000, v{d+1}")
    A("v_mul_f32 v55, v52, v55\nv_mul_f32 v56, v52, v56\nv_mul_f32 v57, v52, v57\nv_mul_f32 v58, v52, v58")
    A(f"s_mov_b64 exec, s[{46+2*u}:{47+2*u}]")
    A("v_xor_b32 v59, 64, v53")
    A("ds_add_f32 v53, v55\nds_add_f32 v59, v56\nds_add_f32 v53, v57 offset:128\nds_add_f32 v59, v58 offset:128\ns_mov_b64 exec, -1")
A("s_add_u32 s44, s44, 512\ns_branch LB_g\nLB_gend:")
A(f"s_waitcnt lgkmcnt(0)\ns_barrier\ns_mov_b32 s32, s33\ns_branch LB_batch")
A(f"""LB_mfma:
s_cmp_ge_u32 s3, 14
s_cbranch_scc1 LB_end
s_lshr_b32 s28, s3, 1
s_lshl_b32 s28, s28, 5
v_add_u32 v16, s28, v10
s_mul_i32 s29, s2, {NB}
v_add_u32 v17, s29, v16
v_lshlrev_b32 v17, 7, v17
v_lshl_add_u32 v18, v11, 4, v17""")
A("s_waitcnt vmcnt(0)")
for i in range(32): A(f"v_lshl_or_b32 v{64+i}, v{96+i}, 16, v{64+i}")
for s in range(4): A(f"buffer_load_dwordx4 v[{96+4*s}:{99+4*s}], v18, s[8:11], 0 offen offset:{32*s}")
A(f"""v_min_u32 v19, {NB-1}, v16
v_and_b32 v20, 1, v19
v_lshlrev_b32 v20, 6, v20
v_lshlrev_b32 v19, 8, v19
v_lshl_add_u32 v19, v11, 3, v19
v_xor_b32 v19, v19, v20
v_xor_b32 v21, 64, v19""")
for s in range(4):
    b=24+8*s
    A(f"ds_read_b64 v[{b}:{b+1}], v19 offset:{16*s}\nds_read_b64 v[{b+2}:{b+3}], v21 offset:{16*s}\nds_read_b64 v[{b+4}:{b+5}], v19 offset:{128+16*s}\nds_read_b64 v[{b+6}:{b+7}], v21 offset:{128+16*s}")
A("s_waitcnt lgkmcnt(0)")
for s in range(4):
    b=24+8*s; t=112+4*s
    A(f"v_cvt_pk_bf16_f32 v{t}, v{b}, v{b+2}\nv_cvt_pk_bf16_f32 v{t+1}, v{b+4}, v{b+6}\nv_cvt_pk_bf16_f32 v{t+2}, v{b+1}, v{b+3}\nv_cvt_pk_bf16_f32 v{t+3}, v{b+5}, v{b+7}")
for i in range(16): A(f"v_mov_b32 v{24+i}, 0")
A("s_waitcnt vmcnt(0)\ns_nop 1")
for s in range(8):
    A(f"v_mfma_f32_32x32x16_bf16 v[24:39], v[{64+4*s}:{67+4*s}], v[{96+4*s}:{99+4*s}], v[24:39]")
A("s_nop 15\ns_nop 3")
A(f"v_cmp_gt_u32 vcc, {NB}, v16\ns_and_b64 exec, exec, vcc\ns_and_b32 s28, s3, 1\ns_lshl_b32 s28, s28, 6\nv_lshl_add_u32 v18, v11, 3, v17\nv_add_u32 v18, s28, v18")
for q in range(4):
    A(f"v_cvt_pk_bf16_f32 v{40+2*q}, v{24+4*q}, v{25+4*q}\nv_cvt_pk_bf16_f32 v{41+2*q}, v{26+4*q}, v{27+4*q}")
    A(f"buffer_store_dwordx2 v[{40+2*q}:{41+2*q}], v18, s[16:19], 0 offen offset:{16*q}")
A("LB_end:\ns_endpgm")
A('.section .rodata,"a"')
for name,vg in (("cheb_a_kernel",48),("cheb_b_kernel",128)):
    A(f""".p2align 6
.amdhsa_kernel {name}
  .amdhsa_next_free_vgpr {vg}
  .amdhsa_next_free_sgpr 72
  .amdhsa_accum_offset {vg}
  .amdhsa_group_segment_fixed_size 0
  .amdhsa_kernarg_size 64
  .amdhsa_user_sgpr_count 2
  .amdhsa_user_sgpr_kernarg_segment_ptr 1
  .amdhsa_system_sgpr_workgroup_id_x 1
.end_amdhsa_kernel""")
open('standalone__spectral_conv_chebnet__graph.s','w').write('\n'.join(o)+'\n')
```

```python
N=50000; E=800000; G=256; C=3125; NB=196; NBUCK=256
REC_BYTES=E*8; TAB_OFF=REC_BYTES; WS_BYTES=TAB_OFF+NBUCK*G*4
M=-(-(1<<32)//NB)
assert all((d*M)>>32 == d//NB for d in range(NBUCK*NB))
CAP=4096
ACC_BYTES=NB*256
HIST=0; RPTR=1024; LIST=2048; SORT=LIST+CAP*8; SEG=SORT+CAP*8; TOT=SEG+G*16; ACC=TOT+16; LDSB=ACC+ACC_BYTES
o=[]
def A(s): o.append(s)
hdr=open('standalone__spectral_conv_chebnet__graph.s.ref').read().split('\n')
for l in hdr[:9]: A(l)
A(f"; @launch kernel=cheb_a_kernel grid=({G},1,1) block=(1024,1,1) lds=2048")
A(f"; @launch kernel=cheb_b_kernel grid=({NBUCK},1,1) block=(1024,1,1) lds={LDSB}")
A('.amdgcn_target "amdgcn-amd-amdhsa--gfx950"\n.text')
def srd(d,p,n):
    A(f"s_mov_b32 s{d}, s{p}\ns_and_b32 s{d+1}, s{p+1}, 0xffff\ns_mov_b32 s{d+2}, {n}\ns_mov_b32 s{d+3}, 0x00020000")
def scan(v):
    for k in (1,2,4,8):
        A(f"s_nop 1\nv_add_u32_dpp v{v}, v{v}, v{v} row_shr:{k} row_mask:0xf bank_mask:0xf bound_ctrl:0")
    A(f"s_nop 1\nv_add_u32_dpp v{v}, v{v}, v{v} row_bcast:15 row_mask:0xa bank_mask:0xf")
    A(f"s_nop 1\nv_add_u32_dpp v{v}, v{v}, v{v} row_bcast:31 row_mask:0xc bank_mask:0xf\ns_nop 1")

A(""".globl cheb_a_kernel
.p2align 8
.type cheb_a_kernel,@function
cheb_a_kernel:""")
A(f"s_cmp_ge_u32 s2, {G}\ns_cbranch_scc1 LA_end")
A("""s_load_dwordx4 s[4:7], s[0:1], 8
s_load_dwordx2 s[24:25], s[0:1], 24
s_load_dwordx2 s[26:27], s[0:1], 56
s_waitcnt lgkmcnt(0)""")
srd(8,4,E*4); srd(12,6,E*4); srd(16,24,E*2); srd(20,26,WS_BYTES)
A(f"s_mul_i32 s3, s2, {C}\ns_mov_b32 s43, {C}")
A("""v_lshlrev_b32 v1, 2, v0
v_mov_b32 v2, 0
v_cmp_gt_u32 vcc, 256, v0
s_and_saveexec_b64 s[28:29], vcc
ds_write_b32 v1, v2
s_mov_b64 exec, s[28:29]""")
for k in range(4):
    A(f"v_add_u32 v3, {1024*k}, v0\nv_add_u32 v4, s3, v3\nv_lshlrev_b32 v5, 2, v4\nv_lshlrev_b32 v6, 1, v4")
    A(f"v_cmp_gt_u32 s[{30+2*k}:{31+2*k}], s43, v3\ns_mov_b64 exec, s[{30+2*k}:{31+2*k}]")
    A(f"buffer_load_dword v{10+k}, v5, s[12:15], 0 offen\nbuffer_load_dword v{14+k}, v5, s[8:11], 0 offen\nbuffer_load_ushort v{18+k}, v6, s[16:19], 0 offen")
    A("s_mov_b64 exec, -1")
A("s_waitcnt vmcnt(0) lgkmcnt(0)\ns_barrier\nv_mov_b32 v7, 1")
A(f"s_mov_b32 s40, {M}")
for k in range(4):
    A(f"s_mov_b64 exec, s[{30+2*k}:{31+2*k}]")
    A(f"v_mul_hi_u32 v{22+k}, s40, v{10+k}")
    A(f"v_lshlrev_b32 v8, 2, v{22+k}\nds_add_rtn_u32 v{26+k}, v8, v7")
    A(f"v_mul_u32_u24 v9, {NB}, v{22+k}\nv_sub_u32 v9, v{10+k}, v9\nv_lshl_or_b32 v{18+k}, v9, 16, v{18+k}")
A("s_mov_b64 exec, -1\ns_waitcnt lgkmcnt(0)\ns_barrier")
A("""v_cmp_gt_u32 vcc, 64, v0
s_and_saveexec_b64 s[28:29], vcc
s_cbranch_execz LA_skip
v_lshlrev_b32 v1, 4, v0
ds_read_b128 v[32:35], v1
s_waitcnt lgkmcnt(0)
v_add_u32 v36, v32, v33
v_add_u32 v37, v36, v34
v_add_u32 v38, v37, v35""")
scan(38)
A("""v_sub_u32 v40, v38, v37
v_sub_u32 v40, v40, v35
v_add_u32 v41, v40, v32
v_add_u32 v42, v40, v36
v_add_u32 v43, v40, v37
ds_write_b128 v1, v[40:43] offset:1024""")
A(f"s_lshl_b32 s41, s2, 2\ns_add_u32 s41, s41, {TAB_OFF}\nv_lshlrev_b32 v2, 12, v0")
for j in range(4):
    A(f"v_lshl_or_b32 v44, v{32+j}, 16, v{40+j}\nbuffer_store_dword v44, v2, s[20:23], s41 offen offset:{1024*j}")
A("""LA_skip:
s_mov_b64 exec, s[28:29]
s_waitcnt lgkmcnt(0)
s_barrier""")
A(f"s_mul_i32 s42, s2, {C*8}")
for k in range(4):
    A(f"s_mov_b64 exec, s[{30+2*k}:{31+2*k}]")
    A(f"v_lshlrev_b32 v8, 2, v{22+k}\nds_read_b32 v9, v8 offset:1024\ns_waitcnt lgkmcnt(0)")
    A(f"v_add_u32 v9, v9, v{26+k}\nv_lshlrev_b32 v9, 3, v9\nv_mov_b32 v46, v{14+k}\nv_mov_b32 v47, v{18+k}")
    A("buffer_store_dwordx2 v[46:47], v9, s[20:23], s42 offen\ns_nop 1")
A("LA_end:\ns_endpgm")

A(""".globl cheb_b_kernel
.p2align 8
.type cheb_b_kernel,@function
cheb_b_kernel:""")
A(f"s_cmp_ge_u32 s2, {NBUCK}\ns_cbranch_scc1 LB_end")
A("""s_load_dwordx2 s[4:5], s[0:1], 0
s_load_dwordx4 s[24:27], s[0:1], 32
s_load_dwordx2 s[6:7], s[0:1], 56
s_waitcnt lgkmcnt(0)""")
srd(8,4,N*128); srd(12,24,16384); srd(16,26,N*128); srd(20,6,WS_BYTES)
A("""v_lshrrev_b32 v1, 6, v0
s_nop 0
v_readfirstlane_b32 s3, v1
v_and_b32 v2, 63, v0""")
A("""s_cmp_ge_u32 s3, 14
s_cbranch_scc1 LB_noW
s_and_b32 s28, s3, 1
s_lshl_b32 s28, s28, 6
v_and_b32 v3, 31, v2
v_lshlrev_b32 v3, 1, v3
v_lshrrev_b32 v4, 5, v2
v_lshl_add_u32 v3, v4, 10, v3
v_add_u32 v3, s28, v3""")
for s in range(8):
    for j in range(8):
        off=(s*16+j)*128
        rg=(96 if j&1 else 64)+s*4+j//2
        so="0" if off<4096 else f"s{60+off//4096}"
        A(f"buffer_load_ushort v{rg}, v3, s[12:15], {so} offen offset:{off%4096}")
    if s==0: pass
o.insert(len(o)-64-0, "s_mov_b32 s61, 4096\ns_mov_b32 s62, 8192\ns_mov_b32 s63, 12288")
A("LB_noW:")
A("v_mov_b32 v4, 0\nv_mov_b32 v5, 0\nv_mov_b32 v6, 0\nv_mov_b32 v7, 0\nv_lshlrev_b32 v3, 4, v0")
for k in range(4):
    A(f"v_add_u32 v8, {16384*k}, v3\nv_cmp_gt_u32 vcc, {ACC_BYTES}, v8\ns_and_saveexec_b64 s[28:29], vcc\nv_add_u32 v8, {ACC}, v8\nds_write_b128 v8, v[4:7]\ns_mov_b64 exec, s[28:29]")
A(f"""s_cmp_lg_u32 s3, 0
s_cbranch_scc1 LB_notab
s_lshl_b32 s28, s2, 10
s_add_u32 s28, s28, {TAB_OFF}
v_lshlrev_b32 v3, 4, v2
buffer_load_dwordx4 v[8:11], v3, s[20:23], s28 offen
s_waitcnt vmcnt(0)""")
for j in range(4): A(f"v_lshrrev_b32 v{12+j}, 16, v{8+j}\nv_and_b32 v{8+j}, 0xffff, v{8+j}")
A("v_add_u32 v16, v12, v13\nv_add_u32 v17, v16, v14\nv_add_u32 v18, v17, v15")
scan(18)
A("""v_sub_u32 v20, v18, v17
v_sub_u32 v20, v20, v15
v_lshlrev_b32 v21, 6, v2""")
A(f"v_add_u32 v21, {SEG}, v21\nv_lshlrev_b32 v19, 2, v2\ns_mov_b32 s29, {C*8}")
pref=["v20",None,None,None]
for j in range(4):
    if j==1: A("v_add_u32 v24, v20, v12")
    elif j==2: A("v_add_u32 v24, v20, v16")
    elif j==3: A("v_add_u32 v24, v20, v17")
    else: A("v_mov_b32 v24, v20")
    A(f"v_mov_b32 v25, v{12+j}\nv_add_u32 v26, {j}, v19\nv_mul_lo_u32 v26, v26, s29\nv_lshl_add_u32 v26, v{8+j}, 3, v26\nv_mov_b32 v27, 0")
    A(f"ds_write_b128 v21, v[24:27] offset:{16*j}")
A(f"""v_readlane_b32 s30, v18, 63
v_mov_b32 v3, {TOT}
s_nop 1
v_mov_b32 v4, s30
ds_write_b32 v3, v4
LB_notab:
s_waitcnt lgkmcnt(0)
s_barrier
v_mov_b32 v3, {TOT}
ds_read_b32 v4, v3
s_waitcnt lgkmcnt(0)
v_readfirstlane_b32 s31, v4
s_mov_b32 s32, 0""")
A("""v_and_b32 v10, 31, v2
v_lshrrev_b32 v11, 5, v2
v_lshrrev_b32 v12, 4, v2
v_and_b32 v13, 15, v2
v_lshlrev_b32 v14, 3, v13
v_lshlrev_b32 v15, 2, v13""")
A("LB_batch:\ns_cmp_ge_u32 s32, s31\ns_cbranch_scc1 LB_mfma")
A(f"s_add_u32 s33, s32, {CAP}")
A(f"v_lshlrev_b32 v16, 2, v0\nv_mov_b32 v17, 0\nv_cmp_gt_u32 vcc, 256, v0\ns_and_saveexec_b64 s[36:37], vcc\nds_write_b32 v16, v17 offset:{HIST}\ns_mov_b64 exec, s[36:37]")
A("s_lshl_b32 s34, s3, 4\nv_add_u32 v16, s34, v11\nv_lshlrev_b32 v16, 4, v16")
A(f"v_add_u32 v16, {SEG}, v16")
for k in range(8):
    A(f"ds_read_b128 v[{20+4*k}:{23+4*k}], v16 offset:{32*k}")
A("s_waitcnt lgkmcnt(0)")
for k in range(8):
    p,c,sb=20+4*k,21+4*k,22+4*k
    A(f"v_mov_b32 v{23+4*k}, v10")
    A(f"LB_seg{k}:")
    A(f"v_cmp_lt_u32 vcc, v{23+4*k}, v{c}\ns_and_saveexec_b64 s[36:37], vcc\ns_cbranch_execz LB_sege{k}")
    A(f"v_lshl_add_u32 v17, v{23+4*k}, 3, v{sb}\nbuffer_load_dwordx2 v[18:19], v17, s[20:23], 0 offen")
    A(f"v_add_u32 v17, v{p}, v{23+4*k}\nv_cmp_le_u32 vcc, s32, v17\nv_cmp_gt_u32 s[38:39], s33, v17\ns_and_b64 vcc, vcc, s[38:39]\ns_and_b64 exec, exec, vcc")
    A(f"v_subrev_u32 v17, s32, v17\nv_lshlrev_b32 v17, 3, v17\ns_waitcnt vmcnt(0)\nds_write_b64 v17, v[18:19] offset:{LIST}")
    A(f"s_mov_b64 exec, s[36:37]\nv_add_u32 v{23+4*k}, 32, v{23+4*k}\ns_branch LB_seg{k}")
    A(f"LB_sege{k}:\ns_mov_b64 exec, s[36:37]")
A("s_waitcnt lgkmcnt(0)\ns_barrier")
A("s_min_u32 s35, s33, s31\ns_sub_u32 s35, s35, s32")
A("v_mov_b32 v17, 1")
for k in range(4):
    A(f"v_add_u32 v16, {1024*k}, v0\nv_cmp_gt_u32 s[{46+2*k}:{47+2*k}], s35, v16\ns_mov_b64 exec, s[{46+2*k}:{47+2*k}]")
    A(f"v_lshlrev_b32 v16, 3, v16\nds_read_b64 v[{20+2*k}:{21+2*k}], v16 offset:{LIST}\ns_waitcnt lgkmcnt(0)")
    A(f"v_lshrrev_b32 v{28+k}, 16, v{21+2*k}\nv_lshlrev_b32 v{28+k}, 2, v{28+k}\nds_add_rtn_u32 v{32+k}, v{28+k}, v17 offset:{HIST}")
A("s_mov_b64 exec, -1\ns_waitcnt lgkmcnt(0)\ns_barrier")
A(f"""s_cmp_lg_u32 s3, 0
s_cbranch_scc1 LB_noscan
v_lshlrev_b32 v36, 4, v2
ds_read_b128 v[40:43], v36 offset:{HIST}
s_waitcnt lgkmcnt(0)
v_add_u32 v44, v40, v41
v_add_u32 v45, v44, v42
v_add_u32 v46, v45, v43""")
scan(46)
A(f"""v_sub_u32 v48, v46, v45
v_sub_u32 v48, v48, v43
v_add_u32 v49, v48, v40
v_add_u32 v50, v48, v44
v_add_u32 v51, v48, v45
ds_write_b128 v36, v[48:51] offset:{RPTR}
LB_noscan:
s_waitcnt lgkmcnt(0)
s_barrier""")
for k in range(4):
    A(f"s_mov_b64 exec, s[{46+2*k}:{47+2*k}]\nds_read_b32 v16, v{28+k} offset:{RPTR}\ns_waitcnt lgkmcnt(0)")
    A(f"v_add_u32 v16, v16, v{32+k}\nv_lshlrev_b32 v16, 3, v16\nds_write_b64 v16, v[{20+2*k}:{21+2*k}] offset:{SORT}")
A("s_mov_b64 exec, -1\ns_waitcnt lgkmcnt(0)\ns_barrier")
A("v_and_b32 v60, 1, v12\ns_mov_b32 s44, s3")
A(f"LB_g:\ns_cmp_ge_u32 s44, {NB//2}\ns_cbranch_scc1 LB_gend")
A(f"""s_lshl_b32 s45, s44, 1
v_add_u32 v16, s45, v11
v_lshlrev_b32 v17, 2, v16
ds_read_b32 v18, v17 offset:{RPTR}
ds_read_b32 v19, v17 offset:{HIST}
v_mov_b32 v52, 0
v_mov_b32 v53, 0
v_mov_b32 v54, 0
v_mov_b32 v55, 0
v_mov_b32 v61, v60
s_waitcnt lgkmcnt(0)
LB_p:
v_cmp_lt_u32 vcc, v61, v19
s_cbranch_vccz LB_pend
v_add_u32 v17, v18, v61
v_lshlrev_b32 v17, 3, v17""")
for u in range(8):
    A(f"v_add_u32 v62, {2*u}, v61\nv_cmp_lt_u32 s[{46+2*u}:{47+2*u}], v62, v19\ns_mov_b64 exec, s[{46+2*u}:{47+2*u}]\nds_read_b64 v[{20+2*u}:{21+2*u}], v17 offset:{SORT+16*u}")
A("s_mov_b64 exec, -1\ns_waitcnt lgkmcnt(0)")
for u in range(8):
    A(f"v_lshl_add_u32 v62, v{20+2*u}, 7, v14\ns_mov_b64 exec, s[{46+2*u}:{47+2*u}]\nbuffer_load_dwordx2 v[{36+2*u}:{37+2*u}], v62, s[8:11], 0 offen\ns_mov_b64 exec, -1")
for u in range(8):
    r=21+2*u; d=36+2*u
    A(f"v_lshlrev_b32 v62, 16, v{r}\ns_waitcnt vmcnt({7-u})\ns_mov_b64 exec, s[{46+2*u}:{47+2*u}]")
    A(f"v_lshlrev_b32 v56, 16, v{d}\nv_and_b32 v57, 0xffff0000, v{d}\nv_lshlrev_b32 v58, 16, v{d+1}\nv_and_b32 v59, 0xffff0000, v{d+1}")
    A("v_fmac_f32 v52, v62, v56\nv_fmac_f32 v53, v62, v57\nv_fmac_f32 v54, v62, v58\nv_fmac_f32 v55, v62, v59\ns_mov_b64 exec, -1")
A("v_add_u32 v61, 16, v61\ns_branch LB_p\nLB_pend:")
A(f"v_lshlrev_b32 v17, 8, v16\nv_lshl_add_u32 v17, v13, 4, v17\nv_add_u32 v17, {ACC}, v17\nds_read_b128 v[20:23], v17")
for q in range(4): A(f"v_mov_b32 v{56+q}, v{52+q}")
A("s_nop 1")
for q in range(4): A(f"v_permlane16_swap_b32 v{52+q}, v{56+q}")
A("s_waitcnt lgkmcnt(0)")
for q in range(4): A(f"v_add_f32 v{52+q}, v{52+q}, v{56+q}\nv_add_f32 v{20+q}, v{20+q}, v{52+q}")
A("v_cmp_eq_u32 vcc, 0, v60\ns_and_saveexec_b64 s[36:37], vcc\nds_write_b128 v17, v[20:23]\ns_mov_b64 exec, s[36:37]")
A("s_add_u32 s44, s44, 16\ns_branch LB_g\nLB_gend:")
A(f"s_waitcnt lgkmcnt(0)\ns_barrier\ns_mov_b32 s32, s33\ns_branch LB_batch")
A(f"""LB_mfma:
s_cmp_ge_u32 s3, 14
s_cbranch_scc1 LB_end
s_lshr_b32 s28, s3, 1
s_lshl_b32 s28, s28, 5
v_add_u32 v16, s28, v10
s_mul_i32 s29, s2, {NB}
v_add_u32 v17, s29, v16
v_lshlrev_b32 v17, 7, v17
v_lshl_add_u32 v18, v11, 4, v17""")
A("s_waitcnt vmcnt(0)")
for i in range(32): A(f"v_lshl_or_b32 v{64+i}, v{96+i}, 16, v{64+i}")
for s in range(4): A(f"buffer_load_dwordx4 v[{96+4*s}:{99+4*s}], v18, s[8:11], 0 offen offset:{32*s}")
A(f"v_min_u32 v19, {NB-1}, v16\nv_lshlrev_b32 v19, 8, v19\nv_lshl_add_u32 v19, v11, 5, v19\nv_add_u32 v19, {ACC}, v19")
for s_ in range(4):
    A(f"ds_read_b128 v[{24+8*s_}:{27+8*s_}], v19 offset:{64*s_}\nds_read_b128 v[{28+8*s_}:{31+8*s_}], v19 offset:{64*s_+16}")
A("s_waitcnt lgkmcnt(0)")
for s_ in range(4):
    for q in range(4): A(f"v_cvt_pk_bf16_f32 v{112+4*s_+q}, v{24+8*s_+2*q}, v{25+8*s_+2*q}")
for i in range(16): A(f"v_mov_b32 v{24+i}, 0")
A("s_waitcnt vmcnt(0)\ns_nop 1")
for s in range(8):
    A(f"v_mfma_f32_32x32x16_bf16 v[24:39], v[{64+4*s}:{67+4*s}], v[{96+4*s}:{99+4*s}], v[24:39]")
A("s_nop 15\ns_nop 3")
A(f"v_cmp_gt_u32 vcc, {NB}, v16\ns_and_b64 exec, exec, vcc\ns_and_b32 s28, s3, 1\ns_lshl_b32 s28, s28, 6\nv_lshl_add_u32 v18, v11, 3, v17\nv_add_u32 v18, s28, v18")
for q in range(4):
    A(f"v_cvt_pk_bf16_f32 v{40+2*q}, v{24+4*q}, v{25+4*q}\nv_cvt_pk_bf16_f32 v{41+2*q}, v{26+4*q}, v{27+4*q}")
    A(f"buffer_store_dwordx2 v[{40+2*q}:{41+2*q}], v18, s[16:19], 0 offen offset:{16*q}")
A("LB_end:\ns_endpgm")
A('.section .rodata,"a"')
for name,vg in (("cheb_a_kernel",48),("cheb_b_kernel",128)):
    A(f""".p2align 6
.amdhsa_kernel {name}
  .amdhsa_next_free_vgpr {vg}
  .amdhsa_next_free_sgpr 72
  .amdhsa_accum_offset {vg}
  .amdhsa_group_segment_fixed_size 0
  .amdhsa_kernarg_size 64
  .amdhsa_user_sgpr_count 2
  .amdhsa_user_sgpr_kernarg_segment_ptr 1
  .amdhsa_system_sgpr_workgroup_id_x 1
.end_amdhsa_kernel""")
open('standalone__spectral_conv_chebnet__graph.s','w').write('\n'.join(o)+'\n')
```

```python
N=50000; E=800000; G=256; C=3125; NB=196; NBUCK=256
REC_BYTES=E*8; TAB_OFF=REC_BYTES; WT_OFF=TAB_OFF+NBUCK*G*4; WS_BYTES=WT_OFF+16384
M=-(-(1<<32)//NB)
assert all((d*M)>>32 == d//NB for d in range(NBUCK*NB))
CAP=4096
ACC_BYTES=NB*256
HIST=0; RPTR=1024; LIST=2048; SORT=LIST+CAP*8; SEG=SORT+CAP*8; TOT=SEG+G*16; ACC=TOT+16; LDSB=136192
import os
PROF=os.environ.get('PROF')
o=[]
def A(s): o.append(s)
tsn=[0]
def TS():
    if not PROF: return
    A(f"s_memtime s[90:91]\ns_waitcnt lgkmcnt(0)\ns_mov_b32 s{74+tsn[0]}, s90"); tsn[0]+=1
def TSDUMP(wg):
    if not PROF: return
    A(f"s_cmp_lg_u32 s2, {wg}\ns_cbranch_scc1 LB_nodump\ns_cmp_eq_u32 s3, 0\ns_cselect_b32 s88, 0, 64\ns_cmp_eq_u32 s3, 0\ns_cbranch_scc1 LB_dump\ns_cmp_lg_u32 s3, 13\ns_cbranch_scc1 LB_nodump\nLB_dump:")
    A("s_load_dwordx2 s[92:93], s[0:1], 48\ns_waitcnt lgkmcnt(0)")
    srd(96,92,256)
    A("s_mov_b64 exec, 1\nv_mov_b32 v1, 0")
    for i in range(tsn[0]):
        A(f"v_mov_b32 v2, s{74+i}\nbuffer_store_dword v2, v1, s[96:99], s88 offen offset:{4*i}")
    A("LB_nodump:")
hdr=open('standalone__spectral_conv_chebnet__graph.s.ref').read().split('\n')
for l in hdr[:9]: A(l)
A(f"; @launch kernel=cheb_a_kernel grid=({G},1,1) block=(1024,1,1) lds=2048")
A(f"; @launch kernel=cheb_b_kernel grid=({NBUCK},1,1) block=(1024,1,1) lds={LDSB}")
A('.amdgcn_target "amdgcn-amd-amdhsa--gfx950"\n.text')
def srd(d,p,n):
    A(f"s_mov_b32 s{d}, s{p}\ns_and_b32 s{d+1}, s{p+1}, 0xffff\ns_mov_b32 s{d+2}, {n}\ns_mov_b32 s{d+3}, 0x00020000")
def scan(v):
    for k in (1,2,4,8):
        A(f"s_nop 1\nv_add_u32_dpp v{v}, v{v}, v{v} row_shr:{k} row_mask:0xf bank_mask:0xf bound_ctrl:0")
    A(f"s_nop 1\nv_add_u32_dpp v{v}, v{v}, v{v} row_bcast:15 row_mask:0xa bank_mask:0xf")
    A(f"s_nop 1\nv_add_u32_dpp v{v}, v{v}, v{v} row_bcast:31 row_mask:0xc bank_mask:0xf\ns_nop 1")

A(""".globl cheb_a_kernel
.p2align 8
.type cheb_a_kernel,@function
cheb_a_kernel:""")
A(f"s_cmp_ge_u32 s2, {G}\ns_cbranch_scc1 LA_end")
A("""s_load_dwordx4 s[4:7], s[0:1], 8
s_load_dwordx2 s[24:25], s[0:1], 24
s_load_dwordx2 s[26:27], s[0:1], 56
s_waitcnt lgkmcnt(0)""")
srd(8,4,E*4); srd(12,6,E*4); srd(16,24,E*2); srd(20,26,WS_BYTES)
A(f"s_mul_i32 s3, s2, {C}\ns_mov_b32 s43, {C}")
A("""v_lshlrev_b32 v1, 2, v0
v_mov_b32 v2, 0
v_cmp_gt_u32 vcc, 256, v0
s_and_saveexec_b64 s[28:29], vcc
ds_write_b32 v1, v2
s_mov_b64 exec, s[28:29]""")
for k in range(4):
    A(f"v_add_u32 v3, {1024*k}, v0\nv_add_u32 v4, s3, v3\nv_lshlrev_b32 v5, 2, v4\nv_lshlrev_b32 v6, 1, v4")
    A(f"v_cmp_gt_u32 s[{30+2*k}:{31+2*k}], s43, v3\ns_mov_b64 exec, s[{30+2*k}:{31+2*k}]")
    A(f"buffer_load_dword v{10+k}, v5, s[12:15], 0 offen\nbuffer_load_dword v{14+k}, v5, s[8:11], 0 offen\nbuffer_load_ushort v{18+k}, v6, s[16:19], 0 offen")
    A("s_mov_b64 exec, -1")
A("s_waitcnt vmcnt(0) lgkmcnt(0)\ns_barrier\nv_mov_b32 v7, 1")
A(f"s_mov_b32 s40, {M}")
for k in range(4):
    A(f"s_mov_b64 exec, s[{30+2*k}:{31+2*k}]")
    A(f"v_mul_hi_u32 v{22+k}, s40, v{10+k}")
    A(f"v_lshlrev_b32 v8, 2, v{22+k}\nds_add_rtn_u32 v{26+k}, v8, v7")
    A(f"v_mul_u32_u24 v9, {NB}, v{22+k}\nv_sub_u32 v9, v{10+k}, v9\nv_lshl_or_b32 v{18+k}, v9, 16, v{18+k}")
A("s_mov_b64 exec, -1\ns_waitcnt lgkmcnt(0)\ns_barrier")
A("""v_cmp_gt_u32 vcc, 64, v0
s_and_saveexec_b64 s[28:29], vcc
s_cbranch_execz LA_skip
v_lshlrev_b32 v1, 4, v0
ds_read_b128 v[32:35], v1
s_waitcnt lgkmcnt(0)
v_add_u32 v36, v32, v33
v_add_u32 v37, v36, v34
v_add_u32 v38, v37, v35""")
scan(38)
A("""v_sub_u32 v40, v38, v37
v_sub_u32 v40, v40, v35
v_add_u32 v41, v40, v32
v_add_u32 v42, v40, v36
v_add_u32 v43, v40, v37
ds_write_b128 v1, v[40:43] offset:1024""")
A(f"s_lshl_b32 s41, s2, 2\ns_add_u32 s41, s41, {TAB_OFF}\nv_lshlrev_b32 v2, 12, v0")
for j in range(4):
    A(f"v_lshl_or_b32 v44, v{32+j}, 16, v{40+j}\nbuffer_store_dword v44, v2, s[20:23], s41 offen offset:{1024*j}")
A("""LA_skip:
s_mov_b64 exec, s[28:29]
s_waitcnt lgkmcnt(0)
s_barrier""")
A(f"s_mul_i32 s42, s2, {C*8}")
for k in range(4):
    A(f"s_mov_b64 exec, s[{30+2*k}:{31+2*k}]")
    A(f"v_lshlrev_b32 v8, 2, v{22+k}\nds_read_b32 v9, v8 offset:1024\ns_waitcnt lgkmcnt(0)")
    A(f"v_add_u32 v9, v9, v{26+k}\nv_lshlrev_b32 v9, 3, v9\nv_mov_b32 v46, v{14+k}\nv_mov_b32 v47, v{18+k}")
    A("buffer_store_dwordx2 v[46:47], v9, s[20:23], s42 offen\ns_nop 1")
A("""s_mov_b64 exec, -1
s_cmp_lg_u32 s2, 0
s_cbranch_scc1 LA_end
s_load_dwordx2 s[44:45], s[0:1], 32
s_waitcnt lgkmcnt(0)""")
srd(48,44,16384)
A("""v_and_b32 v1, 63, v0
v_lshrrev_b32 v2, 6, v0
v_lshlrev_b32 v3, 10, v2
v_lshl_add_u32 v3, v1, 1, v3""")
for j in range(8): A(f"buffer_load_ushort v{8+j}, v3, s[48:51], 0 offen offset:{128*j}")
A("s_waitcnt vmcnt(0)")
for j in range(4): A(f"v_lshl_or_b32 v{16+j}, v{9+2*j}, 16, v{8+2*j}")
A(f"v_lshlrev_b32 v4, 8, v1\nv_lshl_add_u32 v4, v2, 4, v4\ns_mov_b32 s46, {WT_OFF}\nbuffer_store_dwordx4 v[16:19], v4, s[20:23], s46 offen")
A("LA_end:\ns_endpgm")

A(""".globl cheb_b_kernel
.p2align 8
.type cheb_b_kernel,@function
cheb_b_kernel:""")
A(f"s_cmp_ge_u32 s2, {NBUCK}\ns_cbranch_scc1 LB_end")
A("""s_load_dwordx2 s[4:5], s[0:1], 0
s_load_dwordx4 s[24:27], s[0:1], 32
s_load_dwordx2 s[6:7], s[0:1], 56
s_waitcnt lgkmcnt(0)""")
srd(8,4,N*128); srd(12,24,16384); srd(16,26,N*128); srd(20,6,WS_BYTES)
TS()
A("""v_lshrrev_b32 v1, 6, v0
s_nop 0
v_readfirstlane_b32 s3, v1
v_and_b32 v2, 63, v0""")
CAPF=4608
SORTF=2112; DUMB=CAPF//4; ACF=SORTF+CAPF*8+32; AFS=272; TSL=ACF+224*AFS; TND=TSL+128*256; FEND=TND+512
ZEND=TSL
assert LDSB>=FEND
A(f"s_lshl_b32 s28, s2, 10\ns_add_u32 s28, s28, {TAB_OFF}")
A("v_lshlrev_b32 v3, 4, v2\nbuffer_load_dwordx4 v[4:7], v3, s[20:23], s28 offen")
A("v_lshrrev_b32 v9, 5, v2\nv_lshlrev_b32 v8, 2, v9\ns_lshl_b32 s29, s3, 6\nv_add_u32 v8, s29, v8")
for k in range(8): A(f"buffer_load_dword v{40+k}, v8, s[20:23], s28 offen offset:{8*k}")
A("v_mov_b32 v12, 0\nv_mov_b32 v13, 0\nv_mov_b32 v14, 0\nv_mov_b32 v15, 0\nv_lshlrev_b32 v3, 4, v0")
ZB=ZEND-SORTF
nz=-(-ZB//16384)
for k in range(nz):
    if (k+1)*16384<=ZB:
        A(f"v_add_u32 v1, {SORTF+16384*k}, v3\nds_write_b128 v1, v[12:15]")
    else:
        A(f"v_add_u32 v1, {16384*k}, v3\nv_cmp_gt_u32 vcc, {ZB}, v1\ns_and_saveexec_b64 s[30:31], vcc\nv_add_u32 v1, {SORTF}, v1\nds_write_b128 v1, v[12:15]\ns_mov_b64 exec, s[30:31]")
A("v_cmp_gt_u32 vcc, 64, v0\ns_and_saveexec_b64 s[30:31], vcc\nds_write_b128 v3, v[12:15]\ns_mov_b64 exec, s[30:31]")
A("s_waitcnt lgkmcnt(0)\ns_barrier")
A(f"v_mov_b32 v13, 0x00ff0000\nv_mov_b32 v15, 0x00ff0000\nv_cmp_gt_u32 vcc, 2, v2\ns_and_saveexec_b64 s[30:31], vcc\nv_lshlrev_b32 v1, 4, v2\nds_write_b128 v1, v[12:15] offset:{SORTF+CAPF*8}\ns_mov_b64 exec, s[30:31]")
TS()
A("s_waitcnt vmcnt(8)")
for j in range(4): A(f"v_lshrrev_b32 v{4+j}, 16, v{4+j}")
A("v_max3_u32 v1, v4, v5, v6\nv_max_u32 v1, v1, v7\nv_cmp_lt_u32 vcc, 32, v1\ns_cbranch_vccnz LB_slow")
A("v_add3_u32 v4, v4, v5, v6\nv_add_u32 v4, v4, v7")
scan(4)
A(f"v_readlane_b32 s30, v4, 63\ns_cmp_gt_u32 s30, {CAPF-3*NB}\ns_cbranch_scc1 LB_slow")
A(f"v_and_b32 v10, 31, v2\ns_lshl_b32 s29, s3, 4\nv_add_u32 v11, s29, v9\nv_mul_u32_u24 v11, {C*8}, v11\nv_lshl_add_u32 v11, v10, 3, v11")
for k in range(1,8): A(f"s_mov_b32 s{56+k}, {2*k*C*8}")
A("s_waitcnt vmcnt(0)")
for k in range(8):
    so="0" if k==0 else f"s{56+k}"
    A(f"v_lshrrev_b32 v1, 16, v{40+k}\nv_and_b32 v3, 0xffff, v{40+k}\nv_lshl_add_u32 v3, v3, 3, v11\nv_cmp_lt_u32 s[{40+2*k}:{41+2*k}], v10, v1\ns_mov_b64 exec, s[{40+2*k}:{41+2*k}]")
    A(f"buffer_load_dwordx2 v[{72+2*k}:{73+2*k}], v3, s[20:23], {so} offen\ns_mov_b64 exec, -1")
A("v_mov_b32 v1, 1")
for k in range(8):
    A(f"s_waitcnt vmcnt({7-k})\ns_mov_b64 exec, s[{40+2*k}:{41+2*k}]\nv_lshrrev_b32 v{88+k}, 16, v{73+2*k}\nv_lshlrev_b32 v{88+k}, 2, v{88+k}\nds_add_rtn_u32 v{96+k}, v{88+k}, v1")
A("s_mov_b64 exec, -1\ns_waitcnt lgkmcnt(0)\ns_barrier")
TS()
A("v_lshlrev_b32 v3, 4, v2\nds_read_b128 v[4:7], v3\ns_waitcnt lgkmcnt(0)")
for j in range(4): A(f"v_add_u32 v{4+j}, 3, v{4+j}\nv_and_b32 v{4+j}, -4, v{4+j}")
A("v_add_u32 v12, v4, v5\nv_add_u32 v13, v12, v6\nv_add_u32 v14, v13, v7")
scan(14)
A(f"""v_sub_u32 v16, v14, v13
v_sub_u32 v16, v16, v7
v_add_u32 v17, v16, v4
v_add_u32 v18, v16, v12
v_add_u32 v19, v16, v13
ds_write_b128 v3, v[16:19] offset:{RPTR}
v_readlane_b32 s30, v14, 63
s_lshr_b32 s31, s30, 2
v_cmp_eq_u32 vcc, 63, v2
s_and_saveexec_b64 s[32:33], vcc
ds_write_b32 v3, v14 offset:{RPTR+16}
s_mov_b64 exec, s[32:33]""")
for k in range(8):
    A(f"s_mov_b64 exec, s[{40+2*k}:{41+2*k}]\nds_read_b32 v{104+k}, v{88+k} offset:{RPTR}")
A("s_waitcnt lgkmcnt(0)")
for k in range(8):
    A(f"s_mov_b64 exec, s[{40+2*k}:{41+2*k}]\nv_add_u32 v1, v{104+k}, v{96+k}\nv_lshlrev_b32 v1, 3, v1\nds_write_b64 v1, v[{72+2*k}:{73+2*k}] offset:{SORTF}")
A("s_mov_b64 exec, -1\ns_waitcnt lgkmcnt(0)\ns_barrier")
TS()
A("v_lshrrev_b32 v1, 3, v2\ns_lshl_b32 s29, s3, 3\nv_add_u32 v46, s29, v1\nv_add_u32 v3, 1, v46")
A("v_mul_u32_u24 v10, s31, v46\nv_lshrrev_b32 v10, 7, v10\nv_mul_u32_u24 v11, s31, v3\nv_lshrrev_b32 v11, 7, v11")
A(f"v_lshlrev_b32 v4, 5, v10\nv_lshlrev_b32 v5, 5, v11\nv_max_u32 v6, 32, v5\nds_read_b32 v4, v4 offset:{SORTF+4}\nds_read_b32 v5, v5 offset:{SORTF+4}\nds_read_b32 v6, v6 offset:{SORTF+4-32}\ns_waitcnt lgkmcnt(0)")
A("v_lshrrev_b32 v47, 16, v4\nv_lshrrev_b32 v5, 16, v5\nv_lshrrev_b32 v6, 16, v6")
A("v_cmp_eq_u32 vcc, v5, v6\nv_cmp_gt_u32 s[40:41], s31, v11\ns_and_b64 vcc, vcc, s[40:41]\nv_cmp_lt_u32 s[40:41], 0, v11\ns_and_b64 vcc, vcc, s[40:41]\nv_mov_b32 v1, 0xff\nv_cndmask_b32 v35, v1, v6, vcc")
A("s_add_u32 s35, s31, 127\ns_lshr_b32 s35, s35, 7\ns_mov_b32 s36, 3")
A(f"v_and_b32 v1, 7, v2\nv_lshlrev_b32 v12, 4, v1\nv_lshlrev_b32 v13, 5, v1\nv_add_u32 v13, {ACF}, v13\nv_mov_b32 v15, {DUMB}\ns_mov_b32 s34, {AFS}")
for i in range(8): A(f"v_mov_b32 v{16+i}, 0")
RB=48; XB=72
for i in range(48): A(f"v_mov_b32 v{XB+i}, 0")
def rdrec(t):
    A(f"v_cmp_lt_u32 vcc, v10, v11\nv_cndmask_b32 v14, v15, v10, vcc\nv_lshlrev_b32 v14, 5, v14\nv_add_u32 v10, 1, v10")
    A(f"ds_read_b128 v[{RB+8*t}:{RB+8*t+3}], v14 offset:{SORTF}\nds_read_b128 v[{RB+8*t+4}:{RB+8*t+7}], v14 offset:{SORTF+16}")
def issue(t):
    A(f"v_lshrrev_b32 v{32+t}, 16, v{RB+8*t+1}\nv_cmp_eq_u32 vcc, 0xff, v{32+t}\nv_cndmask_b32 v{32+t}, v{32+t}, v35, vcc")
    for r in range(4): A(f"v_and_b32 v{36+r}, 0x7fff, v{RB+8*t+2*r}\nv_lshl_add_u32 v{36+r}, v{36+r}, 7, v12")
    for r in range(4): A(f"v_and_b32 v1, 0xffff, v{RB+8*t+2*r+1}\nv_cmp_ne_u32 s[{40+2*r}:{41+2*r}], 0, v1")
    for r in range(4): A(f"s_mov_b64 exec, s[{40+2*r}:{41+2*r}]\nbuffer_load_dwordx4 v[{XB+16*t+4*r}:{XB+16*t+4*r+3}], v{36+r}, s[8:11], 0 offen")
    A("s_mov_b64 exec, -1")
def consume(t,nextkey,vm,steady):
    for r in range(4): A(f"v_and_b32 v{24+2*r}, 0xffff, v{RB+8*t+2*r+1}\nv_lshlrev_b32 v{25+2*r}, 16, v{RB+8*t+2*r+1}")
    if steady: rdrec(t)
    A(f"s_waitcnt vmcnt({vm})")
    for r in range(4):
        for d in range(4):
            A(f"v_dot2c_f32_bf16 v{16+2*d}, v{XB+16*t+4*r+d}, v{24+2*r}\nv_dot2c_f32_bf16 v{17+2*d}, v{XB+16*t+4*r+d}, v{25+2*r}")
    A(f"v_cmp_ne_u32 vcc, v{32+t}, {nextkey}\ns_mov_b64 exec, vcc")
    A(f"v_mad_u32_u24 v14, v{32+t}, s34, v13\nds_write_b128 v14, v[16:19]\nds_write_b128 v14, v[20:23] offset:16")
    for i in range(8): A(f"v_mov_b32 v{16+i}, 0")
    A("s_mov_b64 exec, -1")
    if steady:
        A("s_waitcnt lgkmcnt(2)")
        issue(t)
for t in range(3): rdrec(t)
A("s_waitcnt lgkmcnt(0)")
for t in range(3): issue(t)
A("LF_loop:")
for t in range(3):
    A(f"s_cmp_ge_u32 s36, s35\ns_cbranch_scc1 LF_epi{t}\ns_add_u32 s36, s36, 1")
    consume(t,f"v{32+(t+1)%3}",8,True)
A("s_branch LF_loop")
for t in range(3):
    A(f"LF_epi{t}:")
    consume(t,f"v{32+(t+1)%3}",8,False)
    consume((t+1)%3,f"v{32+(t+2)%3}",4,False)
    consume((t+2)%3,"v35",0,False)
    if t<2: A("s_branch LF_done")
A("LF_done:")
A(f"v_lshlrev_b32 v14, 8, v46\nv_and_b32 v1, 7, v2\nv_lshl_add_u32 v14, v1, 5, v14\nv_add_u32 v14, {TSL}, v14\nds_write_b128 v14, v[16:19]\nds_write_b128 v14, v[20:23] offset:16")
A(f"v_lshlrev_b32 v3, 2, v46\nv_add_u32 v3, {TND}, v3\nds_write_b32 v3, v35")
TS()
A(f"""s_waitcnt vmcnt(0)
s_cmp_ge_u32 s3, 14
s_cbranch_scc1 LF_nold
s_lshr_b32 s28, s3, 1
s_lshl_b32 s28, s28, 5
v_and_b32 v10, 31, v2
v_lshrrev_b32 v11, 5, v2
v_add_u32 v16, s28, v10
s_mul_i32 s29, s2, {NB}
v_add_u32 v17, s29, v16
v_lshlrev_b32 v17, 7, v17
v_lshl_add_u32 v18, v11, 4, v17
s_and_b32 s28, s3, 1
s_lshl_b32 s28, s28, 13
s_add_u32 s28, s28, {WT_OFF}
v_lshlrev_b32 v19, 8, v10
v_lshl_add_u32 v19, v11, 4, v19""")
for s_ in range(4): A(f"buffer_load_dwordx4 v[{96+4*s_}:{99+4*s_}], v18, s[8:11], 0 offen offset:{32*s_}")
for s_ in range(8): A(f"buffer_load_dwordx4 v[{64+4*s_}:{67+4*s_}], v19, s[20:23], s28 offen offset:{32*s_}")
A("LF_nold:\ns_waitcnt lgkmcnt(0)\ns_barrier")
TS()
A("v_lshrrev_b32 v1, 3, v2\ns_lshl_b32 s29, s3, 3\nv_add_u32 v40, s29, v1\nv_add_u32 v41, 1, v40")
A("v_mul_u32_u24 v42, s31, v40\nv_lshrrev_b32 v42, 7, v42\nv_mul_u32_u24 v43, s31, v41\nv_lshrrev_b32 v43, 7, v43")
A("v_cmp_lt_u32 vcc, v42, v43\nv_cmp_ne_u32 s[40:41], v35, v47\ns_and_b64 vcc, vcc, s[40:41]\nv_cmp_lt_u32 s[40:41], 0, v40\ns_and_b64 exec, vcc, s[40:41]")
A(f"s_cbranch_execz LF_cdone\nv_mad_u32_u24 v44, v47, s34, v13\nds_read_b128 v[48:51], v44\nds_read_b128 v[52:55], v44 offset:16\nv_and_b32 v1, 7, v2\nv_lshlrev_b32 v45, 5, v1\nv_add_u32 v45, {TSL}, v45")
A(f"""LF_cl:
v_subrev_u32 v40, 1, v40
v_lshlrev_b32 v3, 2, v40
v_add_u32 v3, {TND}, v3
ds_read_b32 v3, v3
s_waitcnt lgkmcnt(0)
v_cmp_eq_u32 vcc, v3, v47
s_and_b64 exec, exec, vcc
s_cbranch_execz LF_cdone
v_lshl_add_u32 v3, v40, 8, v45
ds_read_b128 v[56:59], v3
ds_read_b128 v[60:63], v3 offset:16
s_waitcnt lgkmcnt(0)""")
for i in range(8): A(f"v_add_f32 v{48+i}, v{48+i}, v{56+i}")
A("""ds_write_b128 v44, v[48:51]
ds_write_b128 v44, v[52:55] offset:16
v_cmp_lt_u32 vcc, 0, v40
s_and_b64 exec, exec, vcc
s_cbranch_execnz LF_cl
LF_cdone:
s_mov_b64 exec, -1
s_waitcnt lgkmcnt(0)
s_barrier""")
A(f"""s_cmp_ge_u32 s3, 14
s_cbranch_scc1 LB_end
v_mul_u32_u24 v19, {AFS}, v16
v_lshl_add_u32 v19, v11, 5, v19
v_add_u32 v19, {ACF}, v19""")
for s_ in range(4):
    A(f"ds_read_b128 v[{24+8*s_}:{27+8*s_}], v19 offset:{64*s_}\nds_read_b128 v[{28+8*s_}:{31+8*s_}], v19 offset:{64*s_+16}")
A("s_waitcnt lgkmcnt(0)")
for s_ in range(4):
    for q in range(4): A(f"v_cvt_pk_bf16_f32 v{112+4*s_+q}, v{24+8*s_+2*q}, v{25+8*s_+2*q}")
for i in range(16): A(f"v_mov_b32 v{24+i}, 0")
A("s_waitcnt vmcnt(0) lgkmcnt(0)\ns_nop 1")
for s_ in range(8):
    A(f"v_mfma_f32_32x32x16_bf16 v[24:39], v[{64+4*s_}:{67+4*s_}], v[{96+4*s_}:{99+4*s_}], v[24:39]")
A("s_nop 15\ns_nop 3")
A(f"v_cmp_gt_u32 vcc, {NB}, v16\ns_and_b64 exec, exec, vcc\ns_and_b32 s28, s3, 1\ns_lshl_b32 s28, s28, 6\nv_lshl_add_u32 v18, v11, 3, v17\nv_add_u32 v18, s28, v18")
for q in range(4):
    A(f"v_cvt_pk_bf16_f32 v{40+2*q}, v{24+4*q}, v{25+4*q}\nv_cvt_pk_bf16_f32 v{41+2*q}, v{26+4*q}, v{27+4*q}")
    A(f"buffer_store_dwordx2 v[{40+2*q}:{41+2*q}], v18, s[16:19], 0 offen offset:{16*q}")
TS()
TSDUMP(5)
A("s_branch LB_end")
_TS=TS
TS=lambda: None
A('LB_slow:\ns_waitcnt vmcnt(0)')
A("""s_cmp_ge_u32 s3, 14
s_cbranch_scc1 LB_noW
s_and_b32 s28, s3, 1
s_lshl_b32 s28, s28, 6
v_and_b32 v3, 31, v2
v_lshlrev_b32 v3, 1, v3
v_lshrrev_b32 v4, 5, v2
v_lshl_add_u32 v3, v4, 10, v3
v_add_u32 v3, s28, v3""")
for s in range(8):
    for j in range(8):
        off=(s*16+j)*128
        rg=(96 if j&1 else 64)+s*4+j//2
        so="0" if off<4096 else f"s{60+off//4096}"
        A(f"buffer_load_ushort v{rg}, v3, s[12:15], {so} offen offset:{off%4096}")
    if s==0: pass
o.insert(len(o)-64-0, "s_mov_b32 s61, 4096\ns_mov_b32 s62, 8192\ns_mov_b32 s63, 12288")
A("LB_noW:")
A("v_mov_b32 v4, 0\nv_mov_b32 v5, 0\nv_mov_b32 v6, 0\nv_mov_b32 v7, 0\nv_lshlrev_b32 v3, 4, v0")
for k in range(4):
    A(f"v_add_u32 v8, {16384*k}, v3\nv_cmp_gt_u32 vcc, {ACC_BYTES}, v8\ns_and_saveexec_b64 s[28:29], vcc\nv_add_u32 v8, {ACC}, v8\nds_write_b128 v8, v[4:7]\ns_mov_b64 exec, s[28:29]")
A(f"""s_cmp_lg_u32 s3, 0
s_cbranch_scc1 LB_notab
s_lshl_b32 s28, s2, 10
s_add_u32 s28, s28, {TAB_OFF}
v_lshlrev_b32 v3, 4, v2
buffer_load_dwordx4 v[8:11], v3, s[20:23], s28 offen
s_waitcnt vmcnt(0)""")
for j in range(4): A(f"v_lshrrev_b32 v{12+j}, 16, v{8+j}\nv_and_b32 v{8+j}, 0xffff, v{8+j}")
A("v_add_u32 v16, v12, v13\nv_add_u32 v17, v16, v14\nv_add_u32 v18, v17, v15")
scan(18)
A("""v_sub_u32 v20, v18, v17
v_sub_u32 v20, v20, v15
v_lshlrev_b32 v21, 6, v2""")
A(f"v_add_u32 v21, {SEG}, v21\nv_lshlrev_b32 v19, 2, v2\ns_mov_b32 s29, {C*8}")
pref=["v20",None,None,None]
for j in range(4):
    if j==1: A("v_add_u32 v24, v20, v12")
    elif j==2: A("v_add_u32 v24, v20, v16")
    elif j==3: A("v_add_u32 v24, v20, v17")
    else: A("v_mov_b32 v24, v20")
    A(f"v_mov_b32 v25, v{12+j}\nv_add_u32 v26, {j}, v19\nv_mul_lo_u32 v26, v26, s29\nv_lshl_add_u32 v26, v{8+j}, 3, v26\nv_mov_b32 v27, 0")
    A(f"ds_write_b128 v21, v[24:27] offset:{16*j}")
A(f"""v_readlane_b32 s30, v18, 63
v_mov_b32 v3, {TOT}
s_nop 1
v_mov_b32 v4, s30
ds_write_b32 v3, v4
LB_notab:
s_waitcnt lgkmcnt(0)
s_barrier
v_mov_b32 v3, {TOT}
ds_read_b32 v4, v3
s_waitcnt lgkmcnt(0)
v_readfirstlane_b32 s31, v4
s_mov_b32 s32, 0""")
TS()
A("""v_and_b32 v10, 31, v2
v_lshrrev_b32 v11, 5, v2
v_lshrrev_b32 v12, 4, v2
v_and_b32 v13, 15, v2
v_lshlrev_b32 v14, 3, v13
v_lshlrev_b32 v15, 2, v13""")
A("LB_batch:\ns_cmp_ge_u32 s32, s31\ns_cbranch_scc1 LB_mfma")
A(f"s_add_u32 s33, s32, {CAP}")
A(f"v_lshlrev_b32 v16, 2, v0\nv_mov_b32 v17, 0\nv_cmp_gt_u32 vcc, 256, v0\ns_and_saveexec_b64 s[36:37], vcc\nds_write_b32 v16, v17 offset:{HIST}\ns_mov_b64 exec, s[36:37]")
A("s_lshl_b32 s34, s3, 4\nv_add_u32 v16, s34, v11\nv_lshlrev_b32 v16, 4, v16")
A(f"v_add_u32 v16, {SEG}, v16")
for k in range(8):
    A(f"ds_read_b128 v[{20+4*k}:{23+4*k}], v16 offset:{32*k}")
A("s_waitcnt lgkmcnt(0)")
for k in range(8):
    p,c,sb=20+4*k,21+4*k,22+4*k
    A(f"v_mov_b32 v{23+4*k}, v10")
    A(f"LB_seg{k}:")
    A(f"v_cmp_lt_u32 vcc, v{23+4*k}, v{c}\ns_and_saveexec_b64 s[36:37], vcc\ns_cbranch_execz LB_sege{k}")
    A(f"v_lshl_add_u32 v17, v{23+4*k}, 3, v{sb}\nbuffer_load_dwordx2 v[18:19], v17, s[20:23], 0 offen")
    A(f"v_add_u32 v17, v{p}, v{23+4*k}\nv_cmp_le_u32 vcc, s32, v17\nv_cmp_gt_u32 s[38:39], s33, v17\ns_and_b64 vcc, vcc, s[38:39]\ns_and_b64 exec, exec, vcc")
    A(f"v_subrev_u32 v17, s32, v17\nv_lshlrev_b32 v17, 3, v17\ns_waitcnt vmcnt(0)\nds_write_b64 v17, v[18:19] offset:{LIST}")
    A(f"s_mov_b64 exec, s[36:37]\nv_add_u32 v{23+4*k}, 32, v{23+4*k}\ns_branch LB_seg{k}")
    A(f"LB_sege{k}:\ns_mov_b64 exec, s[36:37]")
A("s_waitcnt lgkmcnt(0)\ns_barrier")
TS()
A("s_min_u32 s35, s33, s31\ns_sub_u32 s35, s35, s32")
A("v_mov_b32 v17, 1")
for k in range(4):
    A(f"v_add_u32 v16, {1024*k}, v0\nv_cmp_gt_u32 s[{46+2*k}:{47+2*k}], s35, v16\ns_mov_b64 exec, s[{46+2*k}:{47+2*k}]")
    A(f"v_lshlrev_b32 v16, 3, v16\nds_read_b64 v[{20+2*k}:{21+2*k}], v16 offset:{LIST}\ns_waitcnt lgkmcnt(0)")
    A(f"v_lshrrev_b32 v{28+k}, 16, v{21+2*k}\nv_lshlrev_b32 v{28+k}, 2, v{28+k}\nds_add_rtn_u32 v{32+k}, v{28+k}, v17 offset:{HIST}")
A("s_mov_b64 exec, -1\ns_waitcnt lgkmcnt(0)\ns_barrier")
TS()
A(f"""s_cmp_lg_u32 s3, 0
s_cbranch_scc1 LB_noscan
v_lshlrev_b32 v36, 4, v2
ds_read_b128 v[40:43], v36 offset:{HIST}
s_waitcnt lgkmcnt(0)
v_add_u32 v44, v40, v41
v_add_u32 v45, v44, v42
v_add_u32 v46, v45, v43""")
scan(46)
A(f"""v_sub_u32 v48, v46, v45
v_sub_u32 v48, v48, v43
v_add_u32 v49, v48, v40
v_add_u32 v50, v48, v44
v_add_u32 v51, v48, v45
ds_write_b128 v36, v[48:51] offset:{RPTR}
LB_noscan:
s_waitcnt lgkmcnt(0)
s_barrier""")
for k in range(4):
    A(f"s_mov_b64 exec, s[{46+2*k}:{47+2*k}]\nds_read_b32 v16, v{28+k} offset:{RPTR}\ns_waitcnt lgkmcnt(0)")
    A(f"v_add_u32 v16, v16, v{32+k}\nv_lshlrev_b32 v16, 3, v16\nds_write_b64 v16, v[{20+2*k}:{21+2*k}] offset:{SORT}")
A("s_mov_b64 exec, -1\ns_waitcnt lgkmcnt(0)\ns_barrier")
TS()
A("v_and_b32 v60, 1, v12\ns_mov_b32 s44, s3")
A(f"LB_g:\ns_cmp_ge_u32 s44, {NB//2}\ns_cbranch_scc1 LB_gend")
A(f"""s_lshl_b32 s45, s44, 1
v_add_u32 v16, s45, v11
v_lshlrev_b32 v17, 2, v16
ds_read_b32 v18, v17 offset:{RPTR}
ds_read_b32 v19, v17 offset:{HIST}
v_mov_b32 v52, 0
v_mov_b32 v53, 0
v_mov_b32 v54, 0
v_mov_b32 v55, 0
v_mov_b32 v61, v60
s_waitcnt lgkmcnt(0)
LB_p:
v_cmp_lt_u32 vcc, v61, v19
s_cbranch_vccz LB_pend
v_add_u32 v17, v18, v61
v_lshlrev_b32 v17, 3, v17""")
for u in range(8):
    A(f"v_add_u32 v62, {2*u}, v61\nv_cmp_lt_u32 s[{46+2*u}:{47+2*u}], v62, v19\ns_mov_b64 exec, s[{46+2*u}:{47+2*u}]\nds_read_b64 v[{20+2*u}:{21+2*u}], v17 offset:{SORT+16*u}")
A("s_mov_b64 exec, -1\ns_waitcnt lgkmcnt(0)")
for u in range(8):
    A(f"v_lshl_add_u32 v62, v{20+2*u}, 7, v14\ns_mov_b64 exec, s[{46+2*u}:{47+2*u}]\nbuffer_load_dwordx2 v[{36+2*u}:{37+2*u}], v62, s[8:11], 0 offen\ns_mov_b64 exec, -1")
for u in range(8):
    r=21+2*u; d=36+2*u
    A(f"v_lshlrev_b32 v62, 16, v{r}\ns_waitcnt vmcnt({7-u})\ns_mov_b64 exec, s[{46+2*u}:{47+2*u}]")
    A(f"v_lshlrev_b32 v56, 16, v{d}\nv_and_b32 v57, 0xffff0000, v{d}\nv_lshlrev_b32 v58, 16, v{d+1}\nv_and_b32 v59, 0xffff0000, v{d+1}")
    A("v_fmac_f32 v52, v62, v56\nv_fmac_f32 v53, v62, v57\nv_fmac_f32 v54, v62, v58\nv_fmac_f32 v55, v62, v59\ns_mov_b64 exec, -1")
A("v_add_u32 v61, 16, v61\ns_branch LB_p\nLB_pend:")
A(f"v_lshlrev_b32 v17, 8, v16\nv_lshl_add_u32 v17, v13, 4, v17\nv_add_u32 v17, {ACC}, v17\nds_read_b128 v[20:23], v17")
for q in range(4): A(f"v_mov_b32 v{56+q}, v{52+q}")
A("s_nop 1")
for q in range(4): A(f"v_permlane16_swap_b32 v{52+q}, v{56+q}")
A("s_waitcnt lgkmcnt(0)")
for q in range(4): A(f"v_add_f32 v{52+q}, v{52+q}, v{56+q}\nv_add_f32 v{20+q}, v{20+q}, v{52+q}")
A("v_cmp_eq_u32 vcc, 0, v60\ns_and_saveexec_b64 s[36:37], vcc\nds_write_b128 v17, v[20:23]\ns_mov_b64 exec, s[36:37]")
A("s_add_u32 s44, s44, 16\ns_branch LB_g\nLB_gend:")
TS()
A(f"s_waitcnt lgkmcnt(0)\ns_barrier")
TS()
A("s_mov_b32 s32, s33\ns_branch LB_batch")
A(f"""LB_mfma:
s_cmp_ge_u32 s3, 14
s_cbranch_scc1 LB_end
s_lshr_b32 s28, s3, 1
s_lshl_b32 s28, s28, 5
v_add_u32 v16, s28, v10
s_mul_i32 s29, s2, {NB}
v_add_u32 v17, s29, v16
v_lshlrev_b32 v17, 7, v17
v_lshl_add_u32 v18, v11, 4, v17""")
A("s_waitcnt vmcnt(0)")
for i in range(32): A(f"v_lshl_or_b32 v{64+i}, v{96+i}, 16, v{64+i}")
for s in range(4): A(f"buffer_load_dwordx4 v[{96+4*s}:{99+4*s}], v18, s[8:11], 0 offen offset:{32*s}")
A(f"v_min_u32 v19, {NB-1}, v16\nv_lshlrev_b32 v19, 8, v19\nv_lshl_add_u32 v19, v11, 5, v19\nv_add_u32 v19, {ACC}, v19")
for s_ in range(4):
    A(f"ds_read_b128 v[{24+8*s_}:{27+8*s_}], v19 offset:{64*s_}\nds_read_b128 v[{28+8*s_}:{31+8*s_}], v19 offset:{64*s_+16}")
A("s_waitcnt lgkmcnt(0)")
for s_ in range(4):
    for q in range(4): A(f"v_cvt_pk_bf16_f32 v{112+4*s_+q}, v{24+8*s_+2*q}, v{25+8*s_+2*q}")
for i in range(16): A(f"v_mov_b32 v{24+i}, 0")
A("s_waitcnt vmcnt(0)\ns_nop 1")
for s in range(8):
    A(f"v_mfma_f32_32x32x16_bf16 v[24:39], v[{64+4*s}:{67+4*s}], v[{96+4*s}:{99+4*s}], v[24:39]")
A("s_nop 15\ns_nop 3")
A(f"v_cmp_gt_u32 vcc, {NB}, v16\ns_and_b64 exec, exec, vcc\ns_and_b32 s28, s3, 1\ns_lshl_b32 s28, s28, 6\nv_lshl_add_u32 v18, v11, 3, v17\nv_add_u32 v18, s28, v18")
for q in range(4):
    A(f"v_cvt_pk_bf16_f32 v{40+2*q}, v{24+4*q}, v{25+4*q}\nv_cvt_pk_bf16_f32 v{41+2*q}, v{26+4*q}, v{27+4*q}")
    A(f"buffer_store_dwordx2 v[{40+2*q}:{41+2*q}], v18, s[16:19], 0 offen offset:{16*q}")

TS=_TS
A("LB_end:\ns_endpgm")
A('.section .rodata,"a"')
for name,vg in (("cheb_a_kernel",48),("cheb_b_kernel",128)):
    A(f""".p2align 6
.amdhsa_kernel {name}
  .amdhsa_next_free_vgpr {vg}
  .amdhsa_next_free_sgpr 100
  .amdhsa_accum_offset {vg}
  .amdhsa_group_segment_fixed_size 0
  .amdhsa_kernarg_size 64
  .amdhsa_user_sgpr_count 2
  .amdhsa_user_sgpr_kernarg_segment_ptr 1
  .amdhsa_system_sgpr_workgroup_id_x 1
.end_amdhsa_kernel""")
open('profD.s' if PROF else 'standalone__spectral_conv_chebnet__graph.s','w').write('\n'.join(o)+'\n')
```

```python
N=50000; E=800000; G=256; C=3128; NB=196; NBUCK=256
REC_BYTES=G*C*8; TAB_OFF=REC_BYTES; WT_OFF=TAB_OFF+NBUCK*G*4; WS_BYTES=WT_OFF+16384
M=-(-(1<<32)//NB)
assert all((d*M)>>32 == d//NB for d in range(NBUCK*NB))
CAP=4096
ACC_BYTES=NB*256
HIST=0; RPTR=1024; LIST=2048; SORT=LIST+CAP*8; SEG=SORT+CAP*8; TOT=SEG+G*16; ACC=TOT+16; LDSB=136192
import os
PROF=os.environ.get('PROF')
o=[]
def A(s): o.append(s)
tsn=[0]
def TS():
    if not PROF: return
    A(f"s_memtime s[90:91]\ns_waitcnt lgkmcnt(0)\ns_mov_b32 s{74+tsn[0]}, s90"); tsn[0]+=1
def TSDUMP(wg):
    if not PROF: return
    A(f"s_cmp_lg_u32 s2, {wg}\ns_cbranch_scc1 LB_nodump\ns_cmp_eq_u32 s3, 0\ns_cselect_b32 s88, 0, 64\ns_cmp_eq_u32 s3, 0\ns_cbranch_scc1 LB_dump\ns_cmp_lg_u32 s3, 13\ns_cbranch_scc1 LB_nodump\nLB_dump:")
    A("s_load_dwordx2 s[92:93], s[0:1], 48\ns_waitcnt lgkmcnt(0)")
    srd(96,92,256)
    A("s_mov_b64 exec, 1\nv_mov_b32 v1, 0")
    for i in range(tsn[0]):
        A(f"v_mov_b32 v2, s{74+i}\nbuffer_store_dword v2, v1, s[96:99], s88 offen offset:{4*i}")
    A("LB_nodump:")
hdr=open('standalone__spectral_conv_chebnet__graph.s.ref').read().split('\n')
for l in hdr[:9]: A(l)
A(f"; @launch kernel=cheb_a_kernel grid=({G},1,1) block=(1024,1,1) lds={2048+C*8}")
A(f"; @launch kernel=cheb_b_kernel grid=({NBUCK},1,1) block=(1024,1,1) lds={LDSB}")
A('.amdgcn_target "amdgcn-amd-amdhsa--gfx950"\n.text')
def srd(d,p,n):
    A(f"s_mov_b32 s{d}, s{p}\ns_and_b32 s{d+1}, s{p+1}, 0xffff\ns_mov_b32 s{d+2}, {n}\ns_mov_b32 s{d+3}, 0x00020000")
def scan(v):
    for k in (1,2,4,8):
        A(f"s_nop 1\nv_add_u32_dpp v{v}, v{v}, v{v} row_shr:{k} row_mask:0xf bank_mask:0xf bound_ctrl:0")
    A(f"s_nop 1\nv_add_u32_dpp v{v}, v{v}, v{v} row_bcast:15 row_mask:0xa bank_mask:0xf")
    A(f"s_nop 1\nv_add_u32_dpp v{v}, v{v}, v{v} row_bcast:31 row_mask:0xc bank_mask:0xf\ns_nop 1")

A(""".globl cheb_a_kernel
.p2align 8
.type cheb_a_kernel,@function
cheb_a_kernel:""")
A(f"s_cmp_ge_u32 s2, {G}\ns_cbranch_scc1 LA_end")
A("""s_load_dwordx4 s[4:7], s[0:1], 8
s_load_dwordx2 s[24:25], s[0:1], 24
s_load_dwordx2 s[26:27], s[0:1], 56
s_waitcnt lgkmcnt(0)""")
srd(8,4,E*4); srd(12,6,E*4); srd(16,24,E*2); srd(20,26,WS_BYTES)
A("""s_cmp_lg_u32 s2, 0
s_cbranch_scc1 LA_now
s_load_dwordx2 s[52:53], s[0:1], 32
s_waitcnt lgkmcnt(0)""")
srd(48,52,16384)
A("""v_and_b32 v72, 63, v0
v_lshrrev_b32 v73, 6, v0
v_lshlrev_b32 v3, 10, v73
v_lshl_add_u32 v3, v72, 1, v3""")
for j in range(8): A(f"buffer_load_ushort v{64+j}, v3, s[48:51], 0 offen offset:{128*j}")
A("LA_now:")
A(f"s_mul_i32 s3, s2, {C}\ns_sub_u32 s43, {E}, s3\ns_min_u32 s43, s43, {C}\ns_lshr_b32 s43, s43, 2")
A("""v_cmp_gt_u32 s[30:31], s43, v0
s_mov_b64 exec, s[30:31]
v_lshlrev_b32 v5, 4, v0
v_lshlrev_b32 v6, 3, v0
s_lshl_b32 s44, s3, 2
s_lshl_b32 s45, s3, 1
buffer_load_dwordx4 v[10:13], v5, s[12:15], s44 offen
buffer_load_dwordx4 v[14:17], v5, s[8:11], s44 offen
buffer_load_dwordx2 v[18:19], v6, s[16:19], s45 offen
s_mov_b64 exec, -1
v_lshlrev_b32 v1, 2, v0
v_mov_b32 v2, 0
v_cmp_gt_u32 vcc, 256, v0
s_and_saveexec_b64 s[28:29], vcc
ds_write_b32 v1, v2
s_mov_b64 exec, s[28:29]
s_waitcnt lgkmcnt(0)
s_barrier
v_mov_b32 v7, 1""")
A(f"s_mov_b32 s40, {M}\ns_mov_b64 exec, s[30:31]\ns_waitcnt vmcnt(2)")
for k in range(4):
    A(f"v_mul_hi_u32 v{22+k}, s40, v{10+k}")
    A(f"v_lshlrev_b32 v{22+k}, 2, v{22+k}\nds_add_rtn_u32 v{26+k}, v{22+k}, v7")
A("s_waitcnt vmcnt(0)")
A("v_and_b32 v30, 0xffff, v18\nv_lshrrev_b32 v31, 16, v18\nv_and_b32 v32, 0xffff, v19\nv_lshrrev_b32 v33, 16, v19")
for k in range(4):
    A(f"v_mul_u32_u24 v9, {NB//4}, v{22+k}\nv_sub_u32 v9, v{10+k}, v9\nv_lshl_or_b32 v{30+k}, v9, 16, v{30+k}")
A("s_mov_b64 exec, -1\ns_waitcnt lgkmcnt(0)\ns_barrier")
A("""v_and_b32 v2, 63, v0
v_lshlrev_b32 v1, 4, v2
ds_read_b128 v[34:37], v1
s_waitcnt lgkmcnt(0)
v_add_u32 v38, v34, v35
v_add_u32 v39, v38, v36
v_add_u32 v40, v39, v37""")
scan(40)
A("""v_sub_u32 v42, v40, v39
v_sub_u32 v42, v42, v37
v_add_u32 v43, v42, v34
v_add_u32 v44, v42, v38
v_add_u32 v45, v42, v39
ds_write_b128 v1, v[42:45] offset:1024
v_cmp_gt_u32 vcc, 64, v0
s_and_saveexec_b64 s[28:29], vcc
s_cbranch_execz LA_skip""")
A(f"s_lshl_b32 s41, s2, 2\ns_add_u32 s41, s41, {TAB_OFF}\nv_lshlrev_b32 v3, 12, v0")
for j in range(4):
    A(f"v_lshl_or_b32 v{46+j}, v{34+j}, 16, v{42+j}\nbuffer_store_dword v{46+j}, v3, s[20:23], s41 offen offset:{1024*j}")
A("""LA_skip:
s_mov_b64 exec, s[30:31]""")
for k in range(4): A(f"ds_read_b32 v{50+k}, v{22+k} offset:1024")
A("s_waitcnt lgkmcnt(0)")
for k in range(4):
    A(f"v_add_u32 v9, v{50+k}, v{26+k}\nv_lshlrev_b32 v9, 3, v9\nv_mov_b32 v54, v{14+k}\nv_mov_b32 v55, v{30+k}\nds_write_b64 v9, v[54:55] offset:2048")
A("s_mov_b64 exec, -1\ns_waitcnt lgkmcnt(0)\ns_barrier")
A(f"s_mul_i32 s42, s2, {C*8}\ns_lshl_b32 s46, s43, 1\nv_lshlrev_b32 v3, 4, v0")
A("v_cmp_gt_u32 vcc, s46, v0\ns_and_saveexec_b64 s[28:29], vcc\nds_read_b128 v[56:59], v3 offset:2048\ns_mov_b64 exec, s[28:29]")
A("v_add_u32 v4, 1024, v0\nv_cmp_gt_u32 s[32:33], s46, v4\ns_mov_b64 exec, s[32:33]\nds_read_b128 v[60:63], v3 offset:18432\ns_mov_b64 exec, -1\ns_waitcnt lgkmcnt(0)")
A("s_mov_b64 exec, vcc\nbuffer_store_dwordx4 v[56:59], v3, s[20:23], s42 offen\ns_mov_b64 exec, s[32:33]\ns_add_u32 s42, s42, 16384\nbuffer_store_dwordx4 v[60:63], v3, s[20:23], s42 offen")
A("""s_mov_b64 exec, -1
s_cmp_lg_u32 s2, 0
s_cbranch_scc1 LA_end""")
for j in range(4): A(f"v_lshl_or_b32 v{16+j}, v{65+2*j}, 16, v{64+2*j}")
A(f"v_lshlrev_b32 v4, 8, v72\nv_lshl_add_u32 v4, v73, 4, v4\ns_mov_b32 s46, {WT_OFF}\nbuffer_store_dwordx4 v[16:19], v4, s[20:23], s46 offen")
A("LA_end:\ns_endpgm")

A(""".globl cheb_b_kernel
.p2align 8
.type cheb_b_kernel,@function
cheb_b_kernel:""")
A(f"s_cmp_ge_u32 s2, {NBUCK}\ns_cbranch_scc1 LB_end")
A("""s_load_dwordx2 s[4:5], s[0:1], 0
s_load_dwordx4 s[24:27], s[0:1], 32
s_load_dwordx2 s[6:7], s[0:1], 56
s_waitcnt lgkmcnt(0)""")
srd(8,4,N*128); srd(12,24,16384); srd(16,26,N*128); srd(20,6,WS_BYTES)
TS()
A("""v_lshrrev_b32 v1, 6, v0
s_nop 0
v_readfirstlane_b32 s3, v1
v_and_b32 v2, 63, v0""")
CAPF=4608
SORTF=2112; DUMB=CAPF//4; ACF=SORTF+CAPF*8+32; AFS=272; TSL=ACF+224*AFS; TND=TSL+128*256; FEND=TND+512
ZEND=TSL
assert LDSB>=FEND
A(f"s_lshl_b32 s28, s2, 10\ns_add_u32 s28, s28, {TAB_OFF}")
A("v_lshlrev_b32 v3, 4, v2\nbuffer_load_dwordx4 v[4:7], v3, s[20:23], s28 offen")
A("v_lshrrev_b32 v9, 5, v2\nv_lshlrev_b32 v8, 2, v9\ns_lshl_b32 s29, s3, 6\nv_add_u32 v8, s29, v8")
for k in range(8): A(f"buffer_load_dword v{40+k}, v8, s[20:23], s28 offen offset:{8*k}")
A("v_mov_b32 v12, 0\nv_mov_b32 v13, 0\nv_mov_b32 v14, 0\nv_mov_b32 v15, 0\nv_lshlrev_b32 v3, 4, v0")
ZB=ZEND-SORTF
nz=-(-ZB//16384)
for k in range(nz):
    if (k+1)*16384<=ZB:
        A(f"v_add_u32 v1, {SORTF+16384*k}, v3\nds_write_b128 v1, v[12:15]")
    else:
        A(f"v_add_u32 v1, {16384*k}, v3\nv_cmp_gt_u32 vcc, {ZB}, v1\ns_and_saveexec_b64 s[30:31], vcc\nv_add_u32 v1, {SORTF}, v1\nds_write_b128 v1, v[12:15]\ns_mov_b64 exec, s[30:31]")
A("v_cmp_gt_u32 vcc, 64, v0\ns_and_saveexec_b64 s[30:31], vcc\nds_write_b128 v3, v[12:15]\ns_mov_b64 exec, s[30:31]")
A("s_waitcnt lgkmcnt(0)\ns_barrier")
A(f"v_mov_b32 v13, 0x00ff0000\nv_mov_b32 v15, 0x00ff0000\nv_cmp_gt_u32 vcc, 2, v2\ns_and_saveexec_b64 s[30:31], vcc\nv_lshlrev_b32 v1, 4, v2\nds_write_b128 v1, v[12:15] offset:{SORTF+CAPF*8}\ns_mov_b64 exec, s[30:31]")
TS()
A("s_waitcnt vmcnt(8)")
for j in range(4): A(f"v_lshrrev_b32 v{4+j}, 16, v{4+j}")
A("v_max3_u32 v1, v4, v5, v6\nv_max_u32 v1, v1, v7\nv_cmp_lt_u32 vcc, 32, v1\ns_cbranch_vccnz LB_slow")
A("v_add3_u32 v4, v4, v5, v6\nv_add_u32 v4, v4, v7")
scan(4)
A(f"v_readlane_b32 s30, v4, 63\ns_cmp_gt_u32 s30, {CAPF-3*NB}\ns_cbranch_scc1 LB_slow")
A(f"v_and_b32 v10, 31, v2\ns_lshl_b32 s29, s3, 4\nv_add_u32 v11, s29, v9\nv_mul_u32_u24 v11, {C*8}, v11\nv_lshl_add_u32 v11, v10, 3, v11")
for k in range(1,8): A(f"s_mov_b32 s{56+k}, {2*k*C*8}")
A("s_waitcnt vmcnt(0)")
for k in range(8):
    so="0" if k==0 else f"s{56+k}"
    A(f"v_lshrrev_b32 v1, 16, v{40+k}\nv_and_b32 v3, 0xffff, v{40+k}\nv_lshl_add_u32 v3, v3, 3, v11\nv_cmp_lt_u32 s[{40+2*k}:{41+2*k}], v10, v1\ns_mov_b64 exec, s[{40+2*k}:{41+2*k}]")
    A(f"buffer_load_dwordx2 v[{72+2*k}:{73+2*k}], v3, s[20:23], {so} offen\ns_mov_b64 exec, -1")
A("v_mov_b32 v1, 1")
for k in range(8):
    A(f"s_waitcnt vmcnt({7-k})\ns_mov_b64 exec, s[{40+2*k}:{41+2*k}]\nv_lshrrev_b32 v{88+k}, 16, v{73+2*k}\nv_lshlrev_b32 v{88+k}, 2, v{88+k}\nds_add_rtn_u32 v{96+k}, v{88+k}, v1")
A("s_mov_b64 exec, -1\ns_waitcnt lgkmcnt(0)\ns_barrier")
TS()
A("v_lshlrev_b32 v3, 4, v2\nds_read_b128 v[4:7], v3\ns_waitcnt lgkmcnt(0)")
for j in range(4): A(f"v_add_u32 v{4+j}, 3, v{4+j}\nv_and_b32 v{4+j}, -4, v{4+j}")
A("v_add_u32 v12, v4, v5\nv_add_u32 v13, v12, v6\nv_add_u32 v14, v13, v7")
scan(14)
A(f"""v_sub_u32 v16, v14, v13
v_sub_u32 v16, v16, v7
v_add_u32 v17, v16, v4
v_add_u32 v18, v16, v12
v_add_u32 v19, v16, v13
ds_write_b128 v3, v[16:19] offset:{RPTR}
v_readlane_b32 s30, v14, 63
s_lshr_b32 s31, s30, 2
v_cmp_eq_u32 vcc, 63, v2
s_and_saveexec_b64 s[32:33], vcc
ds_write_b32 v3, v14 offset:{RPTR+16}
s_mov_b64 exec, s[32:33]""")
for k in range(8):
    A(f"s_mov_b64 exec, s[{40+2*k}:{41+2*k}]\nds_read_b32 v{104+k}, v{88+k} offset:{RPTR}")
A("s_waitcnt lgkmcnt(0)")
for k in range(8):
    A(f"s_mov_b64 exec, s[{40+2*k}:{41+2*k}]\nv_add_u32 v1, v{104+k}, v{96+k}\nv_lshlrev_b32 v1, 3, v1\nds_write_b64 v1, v[{72+2*k}:{73+2*k}] offset:{SORTF}")
A("s_mov_b64 exec, -1\ns_waitcnt lgkmcnt(0)\ns_barrier")
TS()
A("v_lshrrev_b32 v1, 3, v2\ns_lshl_b32 s29, s3, 3\nv_add_u32 v46, s29, v1\nv_add_u32 v3, 1, v46")
A("v_mul_u32_u24 v10, s31, v46\nv_lshrrev_b32 v10, 7, v10\nv_mul_u32_u24 v11, s31, v3\nv_lshrrev_b32 v11, 7, v11")
A(f"v_lshlrev_b32 v4, 5, v10\nv_lshlrev_b32 v5, 5, v11\nv_max_u32 v6, 32, v5\nds_read_b32 v4, v4 offset:{SORTF+4}\nds_read_b32 v5, v5 offset:{SORTF+4}\nds_read_b32 v6, v6 offset:{SORTF+4-32}\ns_waitcnt lgkmcnt(0)")
A("v_lshrrev_b32 v47, 16, v4\nv_lshrrev_b32 v5, 16, v5\nv_lshrrev_b32 v6, 16, v6")
A("v_cmp_eq_u32 vcc, v5, v6\nv_cmp_gt_u32 s[40:41], s31, v11\ns_and_b64 vcc, vcc, s[40:41]\nv_cmp_lt_u32 s[40:41], 0, v11\ns_and_b64 vcc, vcc, s[40:41]\nv_mov_b32 v1, 0xff\nv_cndmask_b32 v35, v1, v6, vcc")
A("s_add_u32 s35, s31, 127\ns_lshr_b32 s35, s35, 7\ns_mov_b32 s36, 3")
A(f"v_and_b32 v1, 7, v2\nv_lshlrev_b32 v12, 4, v1\nv_lshlrev_b32 v13, 5, v1\nv_add_u32 v13, {ACF}, v13\nv_mov_b32 v15, {DUMB}\ns_mov_b32 s34, {AFS}")
for i in range(8): A(f"v_mov_b32 v{16+i}, 0")
RB=48; XB=72
for i in range(48): A(f"v_mov_b32 v{XB+i}, 0")
def rdrec(t):
    A(f"v_cmp_lt_u32 vcc, v10, v11\nv_cndmask_b32 v14, v15, v10, vcc\nv_lshlrev_b32 v14, 5, v14\nv_add_u32 v10, 1, v10")
    A(f"ds_read_b128 v[{RB+8*t}:{RB+8*t+3}], v14 offset:{SORTF}\nds_read_b128 v[{RB+8*t+4}:{RB+8*t+7}], v14 offset:{SORTF+16}")
def issue(t):
    A(f"v_lshrrev_b32 v{32+t}, 16, v{RB+8*t+1}\nv_cmp_eq_u32 vcc, 0xff, v{32+t}\nv_cndmask_b32 v{32+t}, v{32+t}, v35, vcc")
    for r in range(4): A(f"v_lshl_add_u32 v{36+r}, v{RB+8*t+2*r}, 7, v12")
    for r in range(4): A(f"v_and_b32 v1, 0xffff, v{RB+8*t+2*r+1}\nv_cmp_ne_u32 s[{40+2*r}:{41+2*r}], 0, v1")
    for r in range(4): A(f"s_mov_b64 exec, s[{40+2*r}:{41+2*r}]\nbuffer_load_dwordx4 v[{XB+16*t+4*r}:{XB+16*t+4*r+3}], v{36+r}, s[8:11], 0 offen")
    A("s_mov_b64 exec, -1")
def consume(t,nextkey,vm,steady):
    for r in range(4): A(f"v_and_b32 v{24+2*r}, 0xffff, v{RB+8*t+2*r+1}\nv_lshlrev_b32 v{25+2*r}, 16, v{RB+8*t+2*r+1}")
    if steady: rdrec(t)
    A(f"s_waitcnt vmcnt({vm})")
    for r in range(4):
        for d in range(4):
            A(f"v_dot2c_f32_bf16 v{16+2*d}, v{XB+16*t+4*r+d}, v{24+2*r}\nv_dot2c_f32_bf16 v{17+2*d}, v{XB+16*t+4*r+d}, v{25+2*r}")
    A(f"v_cmp_ne_u32 vcc, v{32+t}, {nextkey}\ns_mov_b64 exec, vcc")
    A(f"v_mad_u32_u24 v14, v{32+t}, s34, v13\nds_write_b128 v14, v[16:19]\nds_write_b128 v14, v[20:23] offset:16")
    for i in range(8): A(f"v_mov_b32 v{16+i}, 0")
    A("s_mov_b64 exec, -1")
    if steady:
        A("s_waitcnt lgkmcnt(2)")
        issue(t)
for t in range(3): rdrec(t)
A("s_waitcnt lgkmcnt(0)")
for t in range(3): issue(t)
A("LF_loop:")
for t in range(3):
    A(f"s_cmp_ge_u32 s36, s35\ns_cbranch_scc1 LF_epi{t}\ns_add_u32 s36, s36, 1")
    consume(t,f"v{32+(t+1)%3}",8,True)
A("s_branch LF_loop")
for t in range(3):
    A(f"LF_epi{t}:")
    consume(t,f"v{32+(t+1)%3}",8,False)
    consume((t+1)%3,f"v{32+(t+2)%3}",4,False)
    consume((t+2)%3,"v35",0,False)
    if t<2: A("s_branch LF_done")
A("LF_done:")
A(f"v_lshlrev_b32 v14, 8, v46\nv_and_b32 v1, 7, v2\nv_lshl_add_u32 v14, v1, 5, v14\nv_add_u32 v14, {TSL}, v14\nds_write_b128 v14, v[16:19]\nds_write_b128 v14, v[20:23] offset:16")
A(f"v_lshlrev_b32 v3, 2, v46\nv_add_u32 v3, {TND}, v3\nds_write_b32 v3, v35")
TS()
A(f"""s_waitcnt vmcnt(0)
s_cmp_ge_u32 s3, 14
s_cbranch_scc1 LF_nold
s_lshr_b32 s28, s3, 1
s_lshl_b32 s28, s28, 5
v_and_b32 v10, 31, v2
v_lshrrev_b32 v11, 5, v2
v_add_u32 v16, s28, v10
s_mul_i32 s29, s2, {NB}
v_add_u32 v17, s29, v16
v_lshlrev_b32 v17, 7, v17
v_lshl_add_u32 v18, v11, 4, v17
s_and_b32 s28, s3, 1
s_lshl_b32 s28, s28, 13
s_add_u32 s28, s28, {WT_OFF}
v_lshlrev_b32 v19, 8, v10
v_lshl_add_u32 v19, v11, 4, v19""")
for s_ in range(4): A(f"buffer_load_dwordx4 v[{96+4*s_}:{99+4*s_}], v18, s[8:11], 0 offen offset:{32*s_}")
for s_ in range(8): A(f"buffer_load_dwordx4 v[{64+4*s_}:{67+4*s_}], v19, s[20:23], s28 offen offset:{32*s_}")
A("LF_nold:\ns_waitcnt lgkmcnt(0)\ns_barrier")
TS()
A("v_lshrrev_b32 v1, 3, v2\ns_lshl_b32 s29, s3, 3\nv_add_u32 v40, s29, v1\nv_add_u32 v41, 1, v40")
A("v_mul_u32_u24 v42, s31, v40\nv_lshrrev_b32 v42, 7, v42\nv_mul_u32_u24 v43, s31, v41\nv_lshrrev_b32 v43, 7, v43")
A("v_cmp_lt_u32 vcc, v42, v43\nv_cmp_ne_u32 s[40:41], v35, v47\ns_and_b64 vcc, vcc, s[40:41]\nv_cmp_lt_u32 s[40:41], 0, v40\ns_and_b64 exec, vcc, s[40:41]")
A(f"s_cbranch_execz LF_cdone\nv_mad_u32_u24 v44, v47, s34, v13\nds_read_b128 v[48:51], v44\nds_read_b128 v[52:55], v44 offset:16\nv_and_b32 v1, 7, v2\nv_lshlrev_b32 v45, 5, v1\nv_add_u32 v45, {TSL}, v45")
A(f"""LF_cl:
v_subrev_u32 v40, 1, v40
v_lshlrev_b32 v3, 2, v40
v_add_u32 v3, {TND}, v3
ds_read_b32 v3, v3
s_waitcnt lgkmcnt(0)
v_cmp_eq_u32 vcc, v3, v47
s_and_b64 exec, exec, vcc
s_cbranch_execz LF_cdone
v_lshl_add_u32 v3, v40, 8, v45
ds_read_b128 v[56:59], v3
ds_read_b128 v[60:63], v3 offset:16
s_waitcnt lgkmcnt(0)""")
for i in range(8): A(f"v_add_f32 v{48+i}, v{48+i}, v{56+i}")
A("""ds_write_b128 v44, v[48:51]
ds_write_b128 v44, v[52:55] offset:16
v_cmp_lt_u32 vcc, 0, v40
s_and_b64 exec, exec, vcc
s_cbranch_execnz LF_cl
LF_cdone:
s_mov_b64 exec, -1
s_waitcnt lgkmcnt(0)
s_barrier""")
A(f"""s_cmp_ge_u32 s3, 14
s_cbranch_scc1 LB_end
v_mul_u32_u24 v19, {AFS}, v16
v_lshl_add_u32 v19, v11, 5, v19
v_add_u32 v19, {ACF}, v19""")
for s_ in range(4):
    A(f"ds_read_b128 v[{24+8*s_}:{27+8*s_}], v19 offset:{64*s_}\nds_read_b128 v[{28+8*s_}:{31+8*s_}], v19 offset:{64*s_+16}")
A("s_waitcnt lgkmcnt(0)")
for s_ in range(4):
    for q in range(4): A(f"v_cvt_pk_bf16_f32 v{112+4*s_+q}, v{24+8*s_+2*q}, v{25+8*s_+2*q}")
for i in range(16): A(f"v_mov_b32 v{24+i}, 0")
A("s_waitcnt vmcnt(0) lgkmcnt(0)\ns_nop 1")
for s_ in range(8):
    A(f"v_mfma_f32_32x32x16_bf16 v[24:39], v[{64+4*s_}:{67+4*s_}], v[{96+4*s_}:{99+4*s_}], v[24:39]")
A("s_nop 15\ns_nop 3")
A(f"s_and_b32 s28, s3, 1\ns_lshl_b32 s28, s28, 6\nv_lshl_add_u32 v18, v11, 4, v17\nv_add_u32 v18, s28, v18")
for q in range(4):
    A(f"v_cvt_pk_bf16_f32 v{40+2*q}, v{24+4*q}, v{25+4*q}\nv_cvt_pk_bf16_f32 v{41+2*q}, v{26+4*q}, v{27+4*q}")
A("s_nop 1")
for q2 in range(2):
    A(f"v_permlane32_swap_b32 v{40+4*q2}, v{42+4*q2}\nv_permlane32_swap_b32 v{41+4*q2}, v{43+4*q2}")
A(f"v_cmp_gt_u32 vcc, {NB}, v16\ns_and_b64 exec, exec, vcc")
for q2 in range(2):
    A(f"buffer_store_dwordx4 v[{40+4*q2}:{43+4*q2}], v18, s[16:19], 0 offen offset:{32*q2}")
TS()
TSDUMP(5)
A("s_branch LB_end")
_TS=TS
TS=lambda: None
A('LB_slow:\ns_waitcnt vmcnt(0)')
A("""s_cmp_ge_u32 s3, 14
s_cbranch_scc1 LB_noW
s_and_b32 s28, s3, 1
s_lshl_b32 s28, s28, 6
v_and_b32 v3, 31, v2
v_lshlrev_b32 v3, 1, v3
v_lshrrev_b32 v4, 5, v2
v_lshl_add_u32 v3, v4, 10, v3
v_add_u32 v3, s28, v3""")
for s in range(8):
    for j in range(8):
        off=(s*16+j)*128
        rg=(96 if j&1 else 64)+s*4+j//2
        so="0" if off<4096 else f"s{60+off//4096}"
        A(f"buffer_load_ushort v{rg}, v3, s[12:15], {so} offen offset:{off%4096}")
    if s==0: pass
o.insert(len(o)-64-0, "s_mov_b32 s61, 4096\ns_mov_b32 s62, 8192\ns_mov_b32 s63, 12288")
A("LB_noW:")
A("v_mov_b32 v4, 0\nv_mov_b32 v5, 0\nv_mov_b32 v6, 0\nv_mov_b32 v7, 0\nv_lshlrev_b32 v3, 4, v0")
for k in range(4):
    A(f"v_add_u32 v8, {16384*k}, v3\nv_cmp_gt_u32 vcc, {ACC_BYTES}, v8\ns_and_saveexec_b64 s[28:29], vcc\nv_add_u32 v8, {ACC}, v8\nds_write_b128 v8, v[4:7]\ns_mov_b64 exec, s[28:29]")
A(f"""s_cmp_lg_u32 s3, 0
s_cbranch_scc1 LB_notab
s_lshl_b32 s28, s2, 10
s_add_u32 s28, s28, {TAB_OFF}
v_lshlrev_b32 v3, 4, v2
buffer_load_dwordx4 v[8:11], v3, s[20:23], s28 offen
s_waitcnt vmcnt(0)""")
for j in range(4): A(f"v_lshrrev_b32 v{12+j}, 16, v{8+j}\nv_and_b32 v{8+j}, 0xffff, v{8+j}")
A("v_add_u32 v16, v12, v13\nv_add_u32 v17, v16, v14\nv_add_u32 v18, v17, v15")
scan(18)
A("""v_sub_u32 v20, v18, v17
v_sub_u32 v20, v20, v15
v_lshlrev_b32 v21, 6, v2""")
A(f"v_add_u32 v21, {SEG}, v21\nv_lshlrev_b32 v19, 2, v2\ns_mov_b32 s29, {C*8}")
pref=["v20",None,None,None]
for j in range(4):
    if j==1: A("v_add_u32 v24, v20, v12")
    elif j==2: A("v_add_u32 v24, v20, v16")
    elif j==3: A("v_add_u32 v24, v20, v17")
    else: A("v_mov_b32 v24, v20")
    A(f"v_mov_b32 v25, v{12+j}\nv_add_u32 v26, {j}, v19\nv_mul_lo_u32 v26, v26, s29\nv_lshl_add_u32 v26, v{8+j}, 3, v26\nv_mov_b32 v27, 0")
    A(f"ds_write_b128 v21, v[24:27] offset:{16*j}")
A(f"""v_readlane_b32 s30, v18, 63
v_mov_b32 v3, {TOT}
s_nop 1
v_mov_b32 v4, s30
ds_write_b32 v3, v4
LB_notab:
s_waitcnt lgkmcnt(0)
s_barrier
v_mov_b32 v3, {TOT}
ds_read_b32 v4, v3
s_waitcnt lgkmcnt(0)
v_readfirstlane_b32 s31, v4
s_mov_b32 s32, 0""")
TS()
A("""v_and_b32 v10, 31, v2
v_lshrrev_b32 v11, 5, v2
v_lshrrev_b32 v12, 4, v2
v_and_b32 v13, 15, v2
v_lshlrev_b32 v14, 3, v13
v_lshlrev_b32 v15, 2, v13""")
A("LB_batch:\ns_cmp_ge_u32 s32, s31\ns_cbranch_scc1 LB_mfma")
A(f"s_add_u32 s33, s32, {CAP}")
A(f"v_lshlrev_b32 v16, 2, v0\nv_mov_b32 v17, 0\nv_cmp_gt_u32 vcc, 256, v0\ns_and_saveexec_b64 s[36:37], vcc\nds_write_b32 v16, v17 offset:{HIST}\ns_mov_b64 exec, s[36:37]")
A("s_lshl_b32 s34, s3, 4\nv_add_u32 v16, s34, v11\nv_lshlrev_b32 v16, 4, v16")
A(f"v_add_u32 v16, {SEG}, v16")
for k in range(8):
    A(f"ds_read_b128 v[{20+4*k}:{23+4*k}], v16 offset:{32*k}")
A("s_waitcnt lgkmcnt(0)")
for k in range(8):
    p,c,sb=20+4*k,21+4*k,22+4*k
    A(f"v_mov_b32 v{23+4*k}, v10")
    A(f"LB_seg{k}:")
    A(f"v_cmp_lt_u32 vcc, v{23+4*k}, v{c}\ns_and_saveexec_b64 s[36:37], vcc\ns_cbranch_execz LB_sege{k}")
    A(f"v_lshl_add_u32 v17, v{23+4*k}, 3, v{sb}\nbuffer_load_dwordx2 v[18:19], v17, s[20:23], 0 offen")
    A(f"v_add_u32 v17, v{p}, v{23+4*k}\nv_cmp_le_u32 vcc, s32, v17\nv_cmp_gt_u32 s[38:39], s33, v17\ns_and_b64 vcc, vcc, s[38:39]\ns_and_b64 exec, exec, vcc")
    A(f"v_subrev_u32 v17, s32, v17\nv_lshlrev_b32 v17, 3, v17\ns_waitcnt vmcnt(0)\nds_write_b64 v17, v[18:19] offset:{LIST}")
    A(f"s_mov_b64 exec, s[36:37]\nv_add_u32 v{23+4*k}, 32, v{23+4*k}\ns_branch LB_seg{k}")
    A(f"LB_sege{k}:\ns_mov_b64 exec, s[36:37]")
A("s_waitcnt lgkmcnt(0)\ns_barrier")
TS()
A("s_min_u32 s35, s33, s31\ns_sub_u32 s35, s35, s32")
A("v_mov_b32 v17, 1")
for k in range(4):
    A(f"v_add_u32 v16, {1024*k}, v0\nv_cmp_gt_u32 s[{46+2*k}:{47+2*k}], s35, v16\ns_mov_b64 exec, s[{46+2*k}:{47+2*k}]")
    A(f"v_lshlrev_b32 v16, 3, v16\nds_read_b64 v[{20+2*k}:{21+2*k}], v16 offset:{LIST}\ns_waitcnt lgkmcnt(0)")
    A(f"v_lshrrev_b32 v{28+k}, 16, v{21+2*k}\nv_lshlrev_b32 v{28+k}, 2, v{28+k}\nds_add_rtn_u32 v{32+k}, v{28+k}, v17 offset:{HIST}")
A("s_mov_b64 exec, -1\ns_waitcnt lgkmcnt(0)\ns_barrier")
TS()
A(f"""s_cmp_lg_u32 s3, 0
s_cbranch_scc1 LB_noscan
v_lshlrev_b32 v36, 4, v2
ds_read_b128 v[40:43], v36 offset:{HIST}
s_waitcnt lgkmcnt(0)
v_add_u32 v44, v40, v41
v_add_u32 v45, v44, v42
v_add_u32 v46, v45, v43""")
scan(46)
A(f"""v_sub_u32 v48, v46, v45
v_sub_u32 v48, v48, v43
v_add_u32 v49, v48, v40
v_add_u32 v50, v48, v44
v_add_u32 v51, v48, v45
ds_write_b128 v36, v[48:51] offset:{RPTR}
LB_noscan:
s_waitcnt lgkmcnt(0)
s_barrier""")
for k in range(4):
    A(f"s_mov_b64 exec, s[{46+2*k}:{47+2*k}]\nds_read_b32 v16, v{28+k} offset:{RPTR}\ns_waitcnt lgkmcnt(0)")
    A(f"v_add_u32 v16, v16, v{32+k}\nv_lshlrev_b32 v16, 3, v16\nds_write_b64 v16, v[{20+2*k}:{21+2*k}] offset:{SORT}")
A("s_mov_b64 exec, -1\ns_waitcnt lgkmcnt(0)\ns_barrier")
TS()
A("v_and_b32 v60, 1, v12\ns_mov_b32 s44, s3")
A(f"LB_g:\ns_cmp_ge_u32 s44, {NB//2}\ns_cbranch_scc1 LB_gend")
A(f"""s_lshl_b32 s45, s44, 1
v_add_u32 v16, s45, v11
v_lshlrev_b32 v17, 2, v16
ds_read_b32 v18, v17 offset:{RPTR}
ds_read_b32 v19, v17 offset:{HIST}
v_mov_b32 v52, 0
v_mov_b32 v53, 0
v_mov_b32 v54, 0
v_mov_b32 v55, 0
v_mov_b32 v61, v60
s_waitcnt lgkmcnt(0)
LB_p:
v_cmp_lt_u32 vcc, v61, v19
s_cbranch_vccz LB_pend
v_add_u32 v17, v18, v61
v_lshlrev_b32 v17, 3, v17""")
for u in range(8):
    A(f"v_add_u32 v62, {2*u}, v61\nv_cmp_lt_u32 s[{46+2*u}:{47+2*u}], v62, v19\ns_mov_b64 exec, s[{46+2*u}:{47+2*u}]\nds_read_b64 v[{20+2*u}:{21+2*u}], v17 offset:{SORT+16*u}")
A("s_mov_b64 exec, -1\ns_waitcnt lgkmcnt(0)")
for u in range(8):
    A(f"v_lshl_add_u32 v62, v{20+2*u}, 7, v14\ns_mov_b64 exec, s[{46+2*u}:{47+2*u}]\nbuffer_load_dwordx2 v[{36+2*u}:{37+2*u}], v62, s[8:11], 0 offen\ns_mov_b64 exec, -1")
for u in range(8):
    r=21+2*u; d=36+2*u
    A(f"v_lshlrev_b32 v62, 16, v{r}\ns_waitcnt vmcnt({7-u})\ns_mov_b64 exec, s[{46+2*u}:{47+2*u}]")
    A(f"v_lshlrev_b32 v56, 16, v{d}\nv_and_b32 v57, 0xffff0000, v{d}\nv_lshlrev_b32 v58, 16, v{d+1}\nv_and_b32 v59, 0xffff0000, v{d+1}")
    A("v_fmac_f32 v52, v62, v56\nv_fmac_f32 v53, v62, v57\nv_fmac_f32 v54, v62, v58\nv_fmac_f32 v55, v62, v59\ns_mov_b64 exec, -1")
A("v_add_u32 v61, 16, v61\ns_branch LB_p\nLB_pend:")
A(f"v_lshlrev_b32 v17, 8, v16\nv_lshl_add_u32 v17, v13, 4, v17\nv_add_u32 v17, {ACC}, v17\nds_read_b128 v[20:23], v17")
for q in range(4): A(f"v_mov_b32 v{56+q}, v{52+q}")
A("s_nop 1")
for q in range(4): A(f"v_permlane16_swap_b32 v{52+q}, v{56+q}")
A("s_waitcnt lgkmcnt(0)")
for q in range(4): A(f"v_add_f32 v{52+q}, v{52+q}, v{56+q}\nv_add_f32 v{20+q}, v{20+q}, v{52+q}")
A("v_cmp_eq_u32 vcc, 0, v60\ns_and_saveexec_b64 s[36:37], vcc\nds_write_b128 v17, v[20:23]\ns_mov_b64 exec, s[36:37]")
A("s_add_u32 s44, s44, 16\ns_branch LB_g\nLB_gend:")
TS()
A(f"s_waitcnt lgkmcnt(0)\ns_barrier")
TS()
A("s_mov_b32 s32, s33\ns_branch LB_batch")
A(f"""LB_mfma:
s_cmp_ge_u32 s3, 14
s_cbranch_scc1 LB_end
s_lshr_b32 s28, s3, 1
s_lshl_b32 s28, s28, 5
v_add_u32 v16, s28, v10
s_mul_i32 s29, s2, {NB}
v_add_u32 v17, s29, v16
v_lshlrev_b32 v17, 7, v17
v_lshl_add_u32 v18, v11, 4, v17""")
A("s_waitcnt vmcnt(0)")
for i in range(32): A(f"v_lshl_or_b32 v{64+i}, v{96+i}, 16, v{64+i}")
for s in range(4): A(f"buffer_load_dwordx4 v[{96+4*s}:{99+4*s}], v18, s[8:11], 0 offen offset:{32*s}")
A(f"v_min_u32 v19, {NB-1}, v16\nv_lshlrev_b32 v19, 8, v19\nv_lshl_add_u32 v19, v11, 5, v19\nv_add_u32 v19, {ACC}, v19")
for s_ in range(4):
    A(f"ds_read_b128 v[{24+8*s_}:{27+8*s_}], v19 offset:{64*s_}\nds_read_b128 v[{28+8*s_}:{31+8*s_}], v19 offset:{64*s_+16}")
A("s_waitcnt lgkmcnt(0)")
for s_ in range(4):
    for q in range(4): A(f"v_cvt_pk_bf16_f32 v{112+4*s_+q}, v{24+8*s_+2*q}, v{25+8*s_+2*q}")
for i in range(16): A(f"v_mov_b32 v{24+i}, 0")
A("s_waitcnt vmcnt(0)\ns_nop 1")
for s in range(8):
    A(f"v_mfma_f32_32x32x16_bf16 v[24:39], v[{64+4*s}:{67+4*s}], v[{96+4*s}:{99+4*s}], v[24:39]")
A("s_nop 15\ns_nop 3")
A(f"v_cmp_gt_u32 vcc, {NB}, v16\ns_and_b64 exec, exec, vcc\ns_and_b32 s28, s3, 1\ns_lshl_b32 s28, s28, 6\nv_lshl_add_u32 v18, v11, 3, v17\nv_add_u32 v18, s28, v18")
for q in range(4):
    A(f"v_cvt_pk_bf16_f32 v{40+2*q}, v{24+4*q}, v{25+4*q}\nv_cvt_pk_bf16_f32 v{41+2*q}, v{26+4*q}, v{27+4*q}")
    A(f"buffer_store_dwordx2 v[{40+2*q}:{41+2*q}], v18, s[16:19], 0 offen offset:{16*q}")

TS=_TS
A("LB_end:\ns_endpgm")
A('.section .rodata,"a"')
for name,vg in (("cheb_a_kernel",80),("cheb_b_kernel",128)):
    A(f""".p2align 6
.amdhsa_kernel {name}
  .amdhsa_next_free_vgpr {vg}
  .amdhsa_next_free_sgpr 100
  .amdhsa_accum_offset {vg}
  .amdhsa_group_segment_fixed_size 0
  .amdhsa_kernarg_size 64
  .amdhsa_user_sgpr_count 2
  .amdhsa_user_sgpr_kernarg_segment_ptr 1
  .amdhsa_system_sgpr_workgroup_id_x 1
.end_amdhsa_kernel""")
open('prof.s' if PROF else 'standalone__spectral_conv_chebnet__graph.s','w').write('\n'.join(o)+'\n')
```

```python
N=50000; E=800000; G=256; C=3128; NB=196; NBUCK=256
REC_BYTES=G*C*8; TAB_OFF=REC_BYTES; WT_OFF=TAB_OFF+NBUCK*G*4; WS_BYTES=WT_OFF+16384
M=-(-(1<<32)//NB)
assert all((d*M)>>32 == d//NB for d in range(NBUCK*NB))
CAP=4096
ACC_BYTES=NB*256
HIST=0; RPTR=1024; LIST=2048; SORT=LIST+CAP*8; SEG=SORT+CAP*8; TOT=SEG+G*16; ACC=TOT+16; LDSB=136192
import os
PROF=os.environ.get('PROF')
o=[]
def A(s): o.append(s)
tsn=[0]
def TS():
    if not PROF: return
    A(f"s_memtime s[90:91]\ns_waitcnt lgkmcnt(0)\ns_mov_b32 s{74+tsn[0]}, s90"); tsn[0]+=1
def TSDUMP(wg):
    if not PROF: return
    A(f"s_cmp_lg_u32 s2, {wg}\ns_cbranch_scc1 LB_nodump\ns_cmp_eq_u32 s3, 0\ns_cselect_b32 s88, 0, 64\ns_cmp_eq_u32 s3, 0\ns_cbranch_scc1 LB_dump\ns_cmp_lg_u32 s3, 13\ns_cbranch_scc1 LB_nodump\nLB_dump:")
    A("s_load_dwordx2 s[92:93], s[0:1], 48\ns_waitcnt lgkmcnt(0)")
    srd(96,92,256)
    A("s_mov_b64 exec, 1\nv_mov_b32 v1, 0")
    for i in range(tsn[0]):
        A(f"v_mov_b32 v2, s{74+i}\nbuffer_store_dword v2, v1, s[96:99], s88 offen offset:{4*i}")
    A("LB_nodump:")
hdr=open('standalone__spectral_conv_chebnet__graph.s.ref').read().split('\n')
for l in hdr[:9]: A(l)
A(f"; @launch kernel=cheb_a_kernel grid=({G},1,1) block=(1024,1,1) lds={2048+C*8}")
A(f"; @launch kernel=cheb_b_kernel grid=({NBUCK},1,1) block=(1024,1,1) lds={LDSB}")
A('.amdgcn_target "amdgcn-amd-amdhsa--gfx950"\n.text')
def srd(d,p,n):
    A(f"s_mov_b32 s{d}, s{p}\ns_and_b32 s{d+1}, s{p+1}, 0xffff\ns_mov_b32 s{d+2}, {n}\ns_mov_b32 s{d+3}, 0x00020000")
def scan(v):
    for k in (1,2,4,8):
        A(f"s_nop 1\nv_add_u32_dpp v{v}, v{v}, v{v} row_shr:{k} row_mask:0xf bank_mask:0xf bound_ctrl:0")
    A(f"s_nop 1\nv_add_u32_dpp v{v}, v{v}, v{v} row_bcast:15 row_mask:0xa bank_mask:0xf")
    A(f"s_nop 1\nv_add_u32_dpp v{v}, v{v}, v{v} row_bcast:31 row_mask:0xc bank_mask:0xf\ns_nop 1")

A(""".globl cheb_a_kernel
.p2align 8
.type cheb_a_kernel,@function
cheb_a_kernel:""")
A(f"s_cmp_ge_u32 s2, {G}\ns_cbranch_scc1 LA_end")
A("""s_load_dwordx4 s[4:7], s[0:1], 8
s_load_dwordx2 s[24:25], s[0:1], 24
s_load_dwordx2 s[26:27], s[0:1], 56
s_waitcnt lgkmcnt(0)""")
srd(8,4,E*4); srd(12,6,E*4); srd(16,24,E*2); srd(20,26,WS_BYTES)
A("""s_cmp_lg_u32 s2, 0
s_cbranch_scc1 LA_now
s_load_dwordx2 s[52:53], s[0:1], 32
s_waitcnt lgkmcnt(0)""")
srd(48,52,16384)
A("""v_and_b32 v72, 63, v0
v_lshrrev_b32 v73, 6, v0
v_lshlrev_b32 v3, 10, v73
v_lshl_add_u32 v3, v72, 1, v3""")
for j in range(8): A(f"buffer_load_ushort v{64+j}, v3, s[48:51], 0 offen offset:{128*j}")
A("LA_now:")
A(f"s_mul_i32 s3, s2, {C}\ns_sub_u32 s43, {E}, s3\ns_min_u32 s43, s43, {C}\ns_lshr_b32 s43, s43, 2")
A("""v_cmp_gt_u32 s[30:31], s43, v0
s_mov_b64 exec, s[30:31]
v_lshlrev_b32 v5, 4, v0
v_lshlrev_b32 v6, 3, v0
s_lshl_b32 s44, s3, 2
s_lshl_b32 s45, s3, 1
buffer_load_dwordx4 v[10:13], v5, s[12:15], s44 offen
buffer_load_dwordx4 v[14:17], v5, s[8:11], s44 offen
buffer_load_dwordx2 v[18:19], v6, s[16:19], s45 offen
s_mov_b64 exec, -1
v_lshlrev_b32 v1, 2, v0
v_mov_b32 v2, 0
v_cmp_gt_u32 vcc, 256, v0
s_and_saveexec_b64 s[28:29], vcc
ds_write_b32 v1, v2
s_mov_b64 exec, s[28:29]
s_waitcnt lgkmcnt(0)
s_barrier
v_mov_b32 v7, 1""")
A(f"s_mov_b32 s40, {M}\ns_mov_b64 exec, s[30:31]\ns_waitcnt vmcnt(2)")
for k in range(4):
    A(f"v_mul_hi_u32 v{22+k}, s40, v{10+k}")
    A(f"v_lshlrev_b32 v{22+k}, 2, v{22+k}\nds_add_rtn_u32 v{26+k}, v{22+k}, v7")
A("s_waitcnt vmcnt(0)")
A("v_and_b32 v30, 0xffff, v18\nv_lshrrev_b32 v31, 16, v18\nv_and_b32 v32, 0xffff, v19\nv_lshrrev_b32 v33, 16, v19")
for k in range(4):
    A(f"v_mul_u32_u24 v9, {NB//4}, v{22+k}\nv_sub_u32 v9, v{10+k}, v9\nv_lshl_or_b32 v{30+k}, v9, 16, v{30+k}")
A("s_mov_b64 exec, -1\ns_waitcnt lgkmcnt(0)\ns_barrier")
A("""v_and_b32 v2, 63, v0
v_lshlrev_b32 v1, 4, v2
ds_read_b128 v[34:37], v1
s_waitcnt lgkmcnt(0)
v_add_u32 v38, v34, v35
v_add_u32 v39, v38, v36
v_add_u32 v40, v39, v37""")
scan(40)
A("""v_sub_u32 v42, v40, v39
v_sub_u32 v42, v42, v37
v_add_u32 v43, v42, v34
v_add_u32 v44, v42, v38
v_add_u32 v45, v42, v39
ds_write_b128 v1, v[42:45] offset:1024
v_cmp_gt_u32 vcc, 64, v0
s_and_saveexec_b64 s[28:29], vcc
s_cbranch_execz LA_skip""")
A(f"s_lshl_b32 s41, s2, 2\ns_add_u32 s41, s41, {TAB_OFF}\nv_lshlrev_b32 v3, 12, v0")
for j in range(4):
    A(f"v_lshl_or_b32 v{46+j}, v{34+j}, 16, v{42+j}\nbuffer_store_dword v{46+j}, v3, s[20:23], s41 offen offset:{1024*j}")
A("""LA_skip:
s_mov_b64 exec, s[30:31]""")
for k in range(4): A(f"ds_read_b32 v{50+k}, v{22+k} offset:1024")
A("s_waitcnt lgkmcnt(0)")
for k in range(4):
    A(f"v_add_u32 v9, v{50+k}, v{26+k}\nv_lshlrev_b32 v9, 3, v9\nv_mov_b32 v54, v{14+k}\nv_mov_b32 v55, v{30+k}\nds_write_b64 v9, v[54:55] offset:2048")
A("s_mov_b64 exec, -1\ns_waitcnt lgkmcnt(0)\ns_barrier")
A(f"s_mul_i32 s42, s2, {C*8}\ns_lshl_b32 s46, s43, 1\nv_lshlrev_b32 v3, 4, v0")
A("v_cmp_gt_u32 vcc, s46, v0\ns_and_saveexec_b64 s[28:29], vcc\nds_read_b128 v[56:59], v3 offset:2048\ns_mov_b64 exec, s[28:29]")
A("v_add_u32 v4, 1024, v0\nv_cmp_gt_u32 s[32:33], s46, v4\ns_mov_b64 exec, s[32:33]\nds_read_b128 v[60:63], v3 offset:18432\ns_mov_b64 exec, -1\ns_waitcnt lgkmcnt(0)")
A("s_mov_b64 exec, vcc\nbuffer_store_dwordx4 v[56:59], v3, s[20:23], s42 offen\ns_mov_b64 exec, s[32:33]\ns_add_u32 s42, s42, 16384\nbuffer_store_dwordx4 v[60:63], v3, s[20:23], s42 offen")
A("""s_mov_b64 exec, -1
s_cmp_lg_u32 s2, 0
s_cbranch_scc1 LA_end""")
for j in range(4): A(f"v_lshl_or_b32 v{16+j}, v{65+2*j}, 16, v{64+2*j}")
A(f"v_lshlrev_b32 v4, 8, v72\nv_lshl_add_u32 v4, v73, 4, v4\ns_mov_b32 s46, {WT_OFF}\nbuffer_store_dwordx4 v[16:19], v4, s[20:23], s46 offen")
A("LA_end:\ns_endpgm")

A(""".globl cheb_b_kernel
.p2align 8
.type cheb_b_kernel,@function
cheb_b_kernel:""")
A(f"s_cmp_ge_u32 s2, {NBUCK}\ns_cbranch_scc1 LB_end")
A("""s_load_dwordx2 s[4:5], s[0:1], 0
s_load_dwordx4 s[24:27], s[0:1], 32
s_load_dwordx2 s[6:7], s[0:1], 56
s_waitcnt lgkmcnt(0)""")
srd(8,4,N*128); srd(12,24,16384); srd(16,26,N*128); srd(20,6,WS_BYTES)
TS()
A("""v_lshrrev_b32 v1, 6, v0
s_nop 0
v_readfirstlane_b32 s3, v1
v_and_b32 v2, 63, v0""")
CAPF=4608
SORTF=2112; DUMB=CAPF//4; ACF=SORTF+CAPF*8+32; AFS=272; TSL=ACF+224*AFS; TND=TSL+128*256; FEND=TND+512
ZEND=TSL
assert LDSB>=FEND
A(f"s_lshl_b32 s28, s2, 10\ns_add_u32 s28, s28, {TAB_OFF}")
A("v_lshlrev_b32 v3, 4, v2\nbuffer_load_dwordx4 v[4:7], v3, s[20:23], s28 offen")
A("v_lshrrev_b32 v9, 5, v2\nv_lshlrev_b32 v8, 2, v9\ns_lshl_b32 s29, s3, 6\nv_add_u32 v8, s29, v8")
for k in range(8): A(f"buffer_load_dword v{40+k}, v8, s[20:23], s28 offen offset:{8*k}")
A("v_mov_b32 v12, 0\nv_mov_b32 v13, 0\nv_mov_b32 v14, 0\nv_mov_b32 v15, 0\nv_lshlrev_b32 v3, 4, v0")
ZB=ZEND-SORTF
nz=-(-ZB//16384)
for k in range(nz):
    if (k+1)*16384<=ZB:
        A(f"v_add_u32 v1, {SORTF+16384*k}, v3\nds_write_b128 v1, v[12:15]")
    else:
        A(f"v_add_u32 v1, {16384*k}, v3\nv_cmp_gt_u32 vcc, {ZB}, v1\ns_and_saveexec_b64 s[30:31], vcc\nv_add_u32 v1, {SORTF}, v1\nds_write_b128 v1, v[12:15]\ns_mov_b64 exec, s[30:31]")
A("v_cmp_gt_u32 vcc, 64, v0\ns_and_saveexec_b64 s[30:31], vcc\nds_write_b128 v3, v[12:15]\ns_mov_b64 exec, s[30:31]")
A("s_waitcnt lgkmcnt(0)\ns_barrier")
A(f"v_mov_b32 v13, 0x00ff0000\nv_mov_b32 v15, 0x00ff0000\nv_cmp_gt_u32 vcc, 2, v2\ns_and_saveexec_b64 s[30:31], vcc\nv_lshlrev_b32 v1, 4, v2\nds_write_b128 v1, v[12:15] offset:{SORTF+CAPF*8}\ns_mov_b64 exec, s[30:31]")
TS()
A("s_waitcnt vmcnt(8)")
for j in range(4): A(f"v_lshrrev_b32 v{4+j}, 16, v{4+j}")
A("v_max3_u32 v1, v4, v5, v6\nv_max_u32 v1, v1, v7\nv_cmp_lt_u32 vcc, 32, v1\ns_cbranch_vccnz LB_slow")
A("v_add3_u32 v4, v4, v5, v6\nv_add_u32 v4, v4, v7")
scan(4)
A(f"v_readlane_b32 s30, v4, 63\ns_cmp_gt_u32 s30, {CAPF-3*NB}\ns_cbranch_scc1 LB_slow")
A(f"v_and_b32 v10, 31, v2\ns_lshl_b32 s29, s3, 4\nv_add_u32 v11, s29, v9\nv_mul_u32_u24 v11, {C*8}, v11\nv_lshl_add_u32 v11, v10, 3, v11")
for k in range(1,8): A(f"s_mov_b32 s{56+k}, {2*k*C*8}")
A("s_waitcnt vmcnt(0)")
for k in range(8):
    so="0" if k==0 else f"s{56+k}"
    A(f"v_lshrrev_b32 v1, 16, v{40+k}\nv_and_b32 v3, 0xffff, v{40+k}\nv_lshl_add_u32 v3, v3, 3, v11\nv_cmp_lt_u32 s[{40+2*k}:{41+2*k}], v10, v1\ns_mov_b64 exec, s[{40+2*k}:{41+2*k}]")
    A(f"buffer_load_dwordx2 v[{72+2*k}:{73+2*k}], v3, s[20:23], {so} offen\ns_mov_b64 exec, -1")
A("v_mov_b32 v1, 1")
for k in range(8):
    A(f"s_waitcnt vmcnt({7-k})\ns_mov_b64 exec, s[{40+2*k}:{41+2*k}]\nv_lshrrev_b32 v{88+k}, 16, v{73+2*k}\nv_lshlrev_b32 v{88+k}, 2, v{88+k}\nds_add_rtn_u32 v{96+k}, v{88+k}, v1")
A("s_mov_b64 exec, -1\ns_waitcnt lgkmcnt(0)\ns_barrier")
TS()
A("v_lshlrev_b32 v3, 4, v2\nds_read_b128 v[4:7], v3\ns_waitcnt lgkmcnt(0)")
for j in range(4): A(f"v_add_u32 v{4+j}, 3, v{4+j}\nv_and_b32 v{4+j}, -4, v{4+j}")
A("v_add_u32 v12, v4, v5\nv_add_u32 v13, v12, v6\nv_add_u32 v14, v13, v7")
scan(14)
A(f"""v_sub_u32 v16, v14, v13
v_sub_u32 v16, v16, v7
v_add_u32 v17, v16, v4
v_add_u32 v18, v16, v12
v_add_u32 v19, v16, v13
ds_write_b128 v3, v[16:19] offset:{RPTR}
v_readlane_b32 s30, v14, 63
s_lshr_b32 s31, s30, 2
v_cmp_eq_u32 vcc, 63, v2
s_and_saveexec_b64 s[32:33], vcc
ds_write_b32 v3, v14 offset:{RPTR+16}
s_mov_b64 exec, s[32:33]""")
for k in range(8):
    A(f"s_mov_b64 exec, s[{40+2*k}:{41+2*k}]\nds_read_b32 v{104+k}, v{88+k} offset:{RPTR}")
A("s_waitcnt lgkmcnt(0)")
for k in range(8):
    A(f"s_mov_b64 exec, s[{40+2*k}:{41+2*k}]\nv_add_u32 v1, v{104+k}, v{96+k}\nv_lshlrev_b32 v1, 3, v1\nds_write_b64 v1, v[{72+2*k}:{73+2*k}] offset:{SORTF}")
A("s_mov_b64 exec, -1\ns_waitcnt lgkmcnt(0)\ns_barrier")
TS()
A("v_lshrrev_b32 v1, 3, v2\ns_lshl_b32 s29, s3, 3\nv_add_u32 v46, s29, v1\nv_add_u32 v3, 1, v46")
A("v_mul_u32_u24 v10, s31, v46\nv_lshrrev_b32 v10, 7, v10\nv_mul_u32_u24 v11, s31, v3\nv_lshrrev_b32 v11, 7, v11")
A(f"v_lshlrev_b32 v4, 5, v10\nv_lshlrev_b32 v5, 5, v11\nv_max_u32 v6, 32, v5\nds_read_b32 v4, v4 offset:{SORTF+4}\nds_read_b32 v5, v5 offset:{SORTF+4}\nds_read_b32 v6, v6 offset:{SORTF+4-32}\ns_waitcnt lgkmcnt(0)")
A("v_lshrrev_b32 v47, 16, v4\nv_lshrrev_b32 v5, 16, v5\nv_lshrrev_b32 v6, 16, v6")
A("v_cmp_eq_u32 vcc, v5, v6\nv_cmp_gt_u32 s[40:41], s31, v11\ns_and_b64 vcc, vcc, s[40:41]\nv_cmp_lt_u32 s[40:41], 0, v11\ns_and_b64 vcc, vcc, s[40:41]\nv_mov_b32 v1, 0xff\nv_cndmask_b32 v35, v1, v6, vcc")
A("s_add_u32 s35, s31, 127\ns_lshr_b32 s35, s35, 7\ns_mov_b32 s36, 3")
A(f"v_and_b32 v1, 7, v2\nv_lshlrev_b32 v12, 4, v1\nv_lshlrev_b32 v13, 5, v1\nv_add_u32 v13, {ACF}, v13\nv_mov_b32 v15, {DUMB}\ns_mov_b32 s34, {AFS}")
for i in range(8): A(f"v_mov_b32 v{16+i}, 0")
RB=48; XB=72
for i in range(48): A(f"v_mov_b32 v{XB+i}, 0")
def rdrec(t):
    A(f"v_cmp_lt_u32 vcc, v10, v11\nv_cndmask_b32 v14, v15, v10, vcc\nv_lshlrev_b32 v14, 5, v14\nv_add_u32 v10, 1, v10")
    A(f"ds_read_b128 v[{RB+8*t}:{RB+8*t+3}], v14 offset:{SORTF}\nds_read_b128 v[{RB+8*t+4}:{RB+8*t+7}], v14 offset:{SORTF+16}")
def issue(t):
    A(f"v_lshrrev_b32 v{32+t}, 16, v{RB+8*t+1}\nv_cmp_eq_u32 vcc, 0xff, v{32+t}\nv_cndmask_b32 v{32+t}, v{32+t}, v35, vcc")
    for r in range(4): A(f"v_lshl_add_u32 v{36+r}, v{RB+8*t+2*r}, 7, v12")
    for r in range(4): A(f"v_and_b32 v1, 0xffff, v{RB+8*t+2*r+1}\nv_cmp_ne_u32 s[{40+2*r}:{41+2*r}], 0, v1")
    for r in range(4): A(f"s_mov_b64 exec, s[{40+2*r}:{41+2*r}]\nbuffer_load_dwordx4 v[{XB+16*t+4*r}:{XB+16*t+4*r+3}], v{36+r}, s[8:11], 0 offen")
    A("s_mov_b64 exec, -1")
def consume(t,nextkey,vm,steady):
    for r in range(4): A(f"v_and_b32 v{24+2*r}, 0xffff, v{RB+8*t+2*r+1}\nv_lshlrev_b32 v{25+2*r}, 16, v{RB+8*t+2*r+1}")
    if steady: rdrec(t)
    A(f"s_waitcnt vmcnt({vm})")
    for r in range(4):
        for d in range(4):
            A(f"v_dot2c_f32_bf16 v{16+2*d}, v{XB+16*t+4*r+d}, v{24+2*r}\nv_dot2c_f32_bf16 v{17+2*d}, v{XB+16*t+4*r+d}, v{25+2*r}")
    A(f"v_cmp_ne_u32 vcc, v{32+t}, {nextkey}\ns_mov_b64 exec, vcc")
    A(f"v_mad_u32_u24 v14, v{32+t}, s34, v13\nds_write_b128 v14, v[16:19]\nds_write_b128 v14, v[20:23] offset:16")
    for i in range(8): A(f"v_mov_b32 v{16+i}, 0")
    A("s_mov_b64 exec, -1")
    if steady:
        A("s_waitcnt lgkmcnt(2)")
        issue(t)
A("s_setprio 3")
for t in range(3): rdrec(t)
A("s_waitcnt lgkmcnt(0)")
for t in range(3): issue(t)
A("LF_loop:")
for t in range(3):
    A(f"s_cmp_ge_u32 s36, s35\ns_cbranch_scc1 LF_epi{t}\ns_add_u32 s36, s36, 1\ns_cmp_lt_u32 s36, 6\ns_cbranch_scc1 LF_sp{t}\ns_setprio 2\nLF_sp{t}:")
    consume(t,f"v{32+(t+1)%3}",8,True)
A("s_branch LF_loop")
for t in range(3):
    A(f"LF_epi{t}:\ns_setprio 1")
    consume(t,f"v{32+(t+1)%3}",8,False)
    A("s_setprio 0")
    consume((t+1)%3,f"v{32+(t+2)%3}",4,False)
    consume((t+2)%3,"v35",0,False)
    if t<2: A("s_branch LF_done")
A("LF_done:\ns_setprio 0")
A(f"v_lshlrev_b32 v14, 8, v46\nv_and_b32 v1, 7, v2\nv_lshl_add_u32 v14, v1, 5, v14\nv_add_u32 v14, {TSL}, v14\nds_write_b128 v14, v[16:19]\nds_write_b128 v14, v[20:23] offset:16")
A(f"v_lshlrev_b32 v3, 2, v46\nv_add_u32 v3, {TND}, v3\nds_write_b32 v3, v35")
TS()
A(f"""s_waitcnt vmcnt(0)
s_cmp_ge_u32 s3, 14
s_cbranch_scc1 LF_nold
s_lshr_b32 s28, s3, 1
s_lshl_b32 s28, s28, 5
v_and_b32 v10, 31, v2
v_lshrrev_b32 v11, 5, v2
v_add_u32 v16, s28, v10
s_mul_i32 s29, s2, {NB}
v_add_u32 v17, s29, v16
v_lshlrev_b32 v17, 7, v17
v_lshl_add_u32 v18, v11, 4, v17
s_and_b32 s28, s3, 1
s_lshl_b32 s28, s28, 13
s_add_u32 s28, s28, {WT_OFF}
v_lshlrev_b32 v19, 8, v10
v_lshl_add_u32 v19, v11, 4, v19""")
for s_ in range(4): A(f"buffer_load_dwordx4 v[{96+4*s_}:{99+4*s_}], v18, s[8:11], 0 offen offset:{32*s_}")
for s_ in range(8): A(f"buffer_load_dwordx4 v[{64+4*s_}:{67+4*s_}], v19, s[20:23], s28 offen offset:{32*s_}")
A("LF_nold:\ns_waitcnt lgkmcnt(0)\ns_barrier")
TS()
A("v_lshrrev_b32 v1, 3, v2\ns_lshl_b32 s29, s3, 3\nv_add_u32 v40, s29, v1\nv_add_u32 v41, 1, v40")
A("v_mul_u32_u24 v42, s31, v40\nv_lshrrev_b32 v42, 7, v42\nv_mul_u32_u24 v43, s31, v41\nv_lshrrev_b32 v43, 7, v43")
A("v_cmp_lt_u32 vcc, v42, v43\nv_cmp_ne_u32 s[40:41], v35, v47\ns_and_b64 vcc, vcc, s[40:41]\nv_cmp_lt_u32 s[40:41], 0, v40\ns_and_b64 exec, vcc, s[40:41]")
A(f"s_cbranch_execz LF_cdone\nv_mad_u32_u24 v44, v47, s34, v13\nds_read_b128 v[48:51], v44\nds_read_b128 v[52:55], v44 offset:16\nv_and_b32 v1, 7, v2\nv_lshlrev_b32 v45, 5, v1\nv_add_u32 v45, {TSL}, v45")
A(f"""LF_cl:
v_subrev_u32 v40, 1, v40
v_lshlrev_b32 v3, 2, v40
v_add_u32 v3, {TND}, v3
ds_read_b32 v3, v3
s_waitcnt lgkmcnt(0)
v_cmp_eq_u32 vcc, v3, v47
s_and_b64 exec, exec, vcc
s_cbranch_execz LF_cdone
v_lshl_add_u32 v3, v40, 8, v45
ds_read_b128 v[56:59], v3
ds_read_b128 v[60:63], v3 offset:16
s_waitcnt lgkmcnt(0)""")
for i in range(8): A(f"v_add_f32 v{48+i}, v{48+i}, v{56+i}")
A("""ds_write_b128 v44, v[48:51]
ds_write_b128 v44, v[52:55] offset:16
v_cmp_lt_u32 vcc, 0, v40
s_and_b64 exec, exec, vcc
s_cbranch_execnz LF_cl
LF_cdone:
s_mov_b64 exec, -1
s_waitcnt lgkmcnt(0)
s_barrier""")
A(f"""s_cmp_ge_u32 s3, 14
s_cbranch_scc1 LB_end
v_mul_u32_u24 v19, {AFS}, v16
v_lshl_add_u32 v19, v11, 5, v19
v_add_u32 v19, {ACF}, v19""")
for s_ in range(4):
    A(f"ds_read_b128 v[{24+8*s_}:{27+8*s_}], v19 offset:{64*s_}\nds_read_b128 v[{28+8*s_}:{31+8*s_}], v19 offset:{64*s_+16}")
A("s_waitcnt lgkmcnt(0)")
for s_ in range(4):
    for q in range(4): A(f"v_cvt_pk_bf16_f32 v{112+4*s_+q}, v{24+8*s_+2*q}, v{25+8*s_+2*q}")
for i in range(16): A(f"v_mov_b32 v{24+i}, 0")
A("s_waitcnt vmcnt(0) lgkmcnt(0)\ns_nop 1")
for s_ in range(8):
    A(f"v_mfma_f32_32x32x16_bf16 v[24:39], v[{64+4*s_}:{67+4*s_}], v[{96+4*s_}:{99+4*s_}], v[24:39]")
A("s_nop 15\ns_nop 3")
A(f"s_and_b32 s28, s3, 1\ns_lshl_b32 s28, s28, 6\nv_lshl_add_u32 v18, v11, 4, v17\nv_add_u32 v18, s28, v18")
for q in range(4):
    A(f"v_cvt_pk_bf16_f32 v{40+2*q}, v{24+4*q}, v{25+4*q}\nv_cvt_pk_bf16_f32 v{41+2*q}, v{26+4*q}, v{27+4*q}")
A("s_nop 1")
for q2 in range(2):
    A(f"v_permlane32_swap_b32 v{40+4*q2}, v{42+4*q2}\nv_permlane32_swap_b32 v{41+4*q2}, v{43+4*q2}")
A(f"v_cmp_gt_u32 vcc, {NB}, v16\ns_and_b64 exec, exec, vcc")
for q2 in range(2):
    A(f"buffer_store_dwordx4 v[{40+4*q2}:{43+4*q2}], v18, s[16:19], 0 offen offset:{32*q2}")
TS()
TSDUMP(5)
A("s_branch LB_end")
_TS=TS
TS=lambda: None
A('LB_slow:\ns_waitcnt vmcnt(0)')
A("""s_cmp_ge_u32 s3, 14
s_cbranch_scc1 LB_noW
s_and_b32 s28, s3, 1
s_lshl_b32 s28, s28, 6
v_and_b32 v3, 31, v2
v_lshlrev_b32 v3, 1, v3
v_lshrrev_b32 v4, 5, v2
v_lshl_add_u32 v3, v4, 10, v3
v_add_u32 v3, s28, v3""")
for s in range(8):
    for j in range(8):
        off=(s*16+j)*128
        rg=(96 if j&1 else 64)+s*4+j//2
        so="0" if off<4096 else f"s{60+off//4096}"
        A(f"buffer_load_ushort v{rg}, v3, s[12:15], {so} offen offset:{off%4096}")
    if s==0: pass
o.insert(len(o)-64-0, "s_mov_b32 s61, 4096\ns_mov_b32 s62, 8192\ns_mov_b32 s63, 12288")
A("LB_noW:")
A("v_mov_b32 v4, 0\nv_mov_b32 v5, 0\nv_mov_b32 v6, 0\nv_mov_b32 v7, 0\nv_lshlrev_b32 v3, 4, v0")
for k in range(4):
    A(f"v_add_u32 v8, {16384*k}, v3\nv_cmp_gt_u32 vcc, {ACC_BYTES}, v8\ns_and_saveexec_b64 s[28:29], vcc\nv_add_u32 v8, {ACC}, v8\nds_write_b128 v8, v[4:7]\ns_mov_b64 exec, s[28:29]")
A(f"""s_cmp_lg_u32 s3, 0
s_cbranch_scc1 LB_notab
s_lshl_b32 s28, s2, 10
s_add_u32 s28, s28, {TAB_OFF}
v_lshlrev_b32 v3, 4, v2
buffer_load_dwordx4 v[8:11], v3, s[20:23], s28 offen
s_waitcnt vmcnt(0)""")
for j in range(4): A(f"v_lshrrev_b32 v{12+j}, 16, v{8+j}\nv_and_b32 v{8+j}, 0xffff, v{8+j}")
A("v_add_u32 v16, v12, v13\nv_add_u32 v17, v16, v14\nv_add_u32 v18, v17, v15")
scan(18)
A("""v_sub_u32 v20, v18, v17
v_sub_u32 v20, v20, v15
v_lshlrev_b32 v21, 6, v2""")
A(f"v_add_u32 v21, {SEG}, v21\nv_lshlrev_b32 v19, 2, v2\ns_mov_b32 s29, {C*8}")
pref=["v20",None,None,None]
for j in range(4):
    if j==1: A("v_add_u32 v24, v20, v12")
    elif j==2: A("v_add_u32 v24, v20, v16")
    elif j==3: A("v_add_u32 v24, v20, v17")
    else: A("v_mov_b32 v24, v20")
    A(f"v_mov_b32 v25, v{12+j}\nv_add_u32 v26, {j}, v19\nv_mul_lo_u32 v26, v26, s29\nv_lshl_add_u32 v26, v{8+j}, 3, v26\nv_mov_b32 v27, 0")
    A(f"ds_write_b128 v21, v[24:27] offset:{16*j}")
A(f"""v_readlane_b32 s30, v18, 63
v_mov_b32 v3, {TOT}
s_nop 1
v_mov_b32 v4, s30
ds_write_b32 v3, v4
LB_notab:
s_waitcnt lgkmcnt(0)
s_barrier
v_mov_b32 v3, {TOT}
ds_read_b32 v4, v3
s_waitcnt lgkmcnt(0)
v_readfirstlane_b32 s31, v4
s_mov_b32 s32, 0""")
TS()
A("""v_and_b32 v10, 31, v2
v_lshrrev_b32 v11, 5, v2
v_lshrrev_b32 v12, 4, v2
v_and_b32 v13, 15, v2
v_lshlrev_b32 v14, 3, v13
v_lshlrev_b32 v15, 2, v13""")
A("LB_batch:\ns_cmp_ge_u32 s32, s31\ns_cbranch_scc1 LB_mfma")
A(f"s_add_u32 s33, s32, {CAP}")
A(f"v_lshlrev_b32 v16, 2, v0\nv_mov_b32 v17, 0\nv_cmp_gt_u32 vcc, 256, v0\ns_and_saveexec_b64 s[36:37], vcc\nds_write_b32 v16, v17 offset:{HIST}\ns_mov_b64 exec, s[36:37]")
A("s_lshl_b32 s34, s3, 4\nv_add_u32 v16, s34, v11\nv_lshlrev_b32 v16, 4, v16")
A(f"v_add_u32 v16, {SEG}, v16")
for k in range(8):
    A(f"ds_read_b128 v[{20+4*k}:{23+4*k}], v16 offset:{32*k}")
A("s_waitcnt lgkmcnt(0)")
for k in range(8):
    p,c,sb=20+4*k,21+4*k,22+4*k
    A(f"v_mov_b32 v{23+4*k}, v10")
    A(f"LB_seg{k}:")
    A(f"v_cmp_lt_u32 vcc, v{23+4*k}, v{c}\ns_and_saveexec_b64 s[36:37], vcc\ns_cbranch_execz LB_sege{k}")
    A(f"v_lshl_add_u32 v17, v{23+4*k}, 3, v{sb}\nbuffer_load_dwordx2 v[18:19], v17, s[20:23], 0 offen")
    A(f"v_add_u32 v17, v{p}, v{23+4*k}\nv_cmp_le_u32 vcc, s32, v17\nv_cmp_gt_u32 s[38:39], s33, v17\ns_and_b64 vcc, vcc, s[38:39]\ns_and_b64 exec, exec, vcc")
    A(f"v_subrev_u32 v17, s32, v17\nv_lshlrev_b32 v17, 3, v17\ns_waitcnt vmcnt(0)\nds_write_b64 v17, v[18:19] offset:{LIST}")
    A(f"s_mov_b64 exec, s[36:37]\nv_add_u32 v{23+4*k}, 32, v{23+4*k}\ns_branch LB_seg{k}")
    A(f"LB_sege{k}:\ns_mov_b64 exec, s[36:37]")
A("s_waitcnt lgkmcnt(0)\ns_barrier")
TS()
A("s_min_u32 s35, s33, s31\ns_sub_u32 s35, s35, s32")
A("v_mov_b32 v17, 1")
for k in range(4):
    A(f"v_add_u32 v16, {1024*k}, v0\nv_cmp_gt_u32 s[{46+2*k}:{47+2*k}], s35, v16\ns_mov_b64 exec, s[{46+2*k}:{47+2*k}]")
    A(f"v_lshlrev_b32 v16, 3, v16\nds_read_b64 v[{20+2*k}:{21+2*k}], v16 offset:{LIST}\ns_waitcnt lgkmcnt(0)")
    A(f"v_lshrrev_b32 v{28+k}, 16, v{21+2*k}\nv_lshlrev_b32 v{28+k}, 2, v{28+k}\nds_add_rtn_u32 v{32+k}, v{28+k}, v17 offset:{HIST}")
A("s_mov_b64 exec, -1\ns_waitcnt lgkmcnt(0)\ns_barrier")
TS()
A(f"""s_cmp_lg_u32 s3, 0
s_cbranch_scc1 LB_noscan
v_lshlrev_b32 v36, 4, v2
ds_read_b128 v[40:43], v36 offset:{HIST}
s_waitcnt lgkmcnt(0)
v_add_u32 v44, v40, v41
v_add_u32 v45, v44, v42
v_add_u32 v46, v45, v43""")
scan(46)
A(f"""v_sub_u32 v48, v46, v45
v_sub_u32 v48, v48, v43
v_add_u32 v49, v48, v40
v_add_u32 v50, v48, v44
v_add_u32 v51, v48, v45
ds_write_b128 v36, v[48:51] offset:{RPTR}
LB_noscan:
s_waitcnt lgkmcnt(0)
s_barrier""")
for k in range(4):
    A(f"s_mov_b64 exec, s[{46+2*k}:{47+2*k}]\nds_read_b32 v16, v{28+k} offset:{RPTR}\ns_waitcnt lgkmcnt(0)")
    A(f"v_add_u32 v16, v16, v{32+k}\nv_lshlrev_b32 v16, 3, v16\nds_write_b64 v16, v[{20+2*k}:{21+2*k}] offset:{SORT}")
A("s_mov_b64 exec, -1\ns_waitcnt lgkmcnt(0)\ns_barrier")
TS()
A("v_and_b32 v60, 1, v12\ns_mov_b32 s44, s3")
A(f"LB_g:\ns_cmp_ge_u32 s44, {NB//2}\ns_cbranch_scc1 LB_gend")
A(f"""s_lshl_b32 s45, s44, 1
v_add_u32 v16, s45, v11
v_lshlrev_b32 v17, 2, v16
ds_read_b32 v18, v17 offset:{RPTR}
ds_read_b32 v19, v17 offset:{HIST}
v_mov_b32 v52, 0
v_mov_b32 v53, 0
v_mov_b32 v54, 0
v_mov_b32 v55, 0
v_mov_b32 v61, v60
s_waitcnt lgkmcnt(0)
LB_p:
v_cmp_lt_u32 vcc, v61, v19
s_cbranch_vccz LB_pend
v_add_u32 v17, v18, v61
v_lshlrev_b32 v17, 3, v17""")
for u in range(8):
    A(f"v_add_u32 v62, {2*u}, v61\nv_cmp_lt_u32 s[{46+2*u}:{47+2*u}], v62, v19\ns_mov_b64 exec, s[{46+2*u}:{47+2*u}]\nds_read_b64 v[{20+2*u}:{21+2*u}], v17 offset:{SORT+16*u}")
A("s_mov_b64 exec, -1\ns_waitcnt lgkmcnt(0)")
for u in range(8):
    A(f"v_lshl_add_u32 v62, v{20+2*u}, 7, v14\ns_mov_b64 exec, s[{46+2*u}:{47+2*u}]\nbuffer_load_dwordx2 v[{36+2*u}:{37+2*u}], v62, s[8:11], 0 offen\ns_mov_b64 exec, -1")
for u in range(8):
    r=21+2*u; d=36+2*u
    A(f"v_lshlrev_b32 v62, 16, v{r}\ns_waitcnt vmcnt({7-u})\ns_mov_b64 exec, s[{46+2*u}:{47+2*u}]")
    A(f"v_lshlrev_b32 v56, 16, v{d}\nv_and_b32 v57, 0xffff0000, v{d}\nv_lshlrev_b32 v58, 16, v{d+1}\nv_and_b32 v59, 0xffff0000, v{d+1}")
    A("v_fmac_f32 v52, v62, v56\nv_fmac_f32 v53, v62, v57\nv_fmac_f32 v54, v62, v58\nv_fmac_f32 v55, v62, v59\ns_mov_b64 exec, -1")
A("v_add_u32 v61, 16, v61\ns_branch LB_p\nLB_pend:")
A(f"v_lshlrev_b32 v17, 8, v16\nv_lshl_add_u32 v17, v13, 4, v17\nv_add_u32 v17, {ACC}, v17\nds_read_b128 v[20:23], v17")
for q in range(4): A(f"v_mov_b32 v{56+q}, v{52+q}")
A("s_nop 1")
for q in range(4): A(f"v_permlane16_swap_b32 v{52+q}, v{56+q}")
A("s_waitcnt lgkmcnt(0)")
for q in range(4): A(f"v_add_f32 v{52+q}, v{52+q}, v{56+q}\nv_add_f32 v{20+q}, v{20+q}, v{52+q}")
A("v_cmp_eq_u32 vcc, 0, v60\ns_and_saveexec_b64 s[36:37], vcc\nds_write_b128 v17, v[20:23]\ns_mov_b64 exec, s[36:37]")
A("s_add_u32 s44, s44, 16\ns_branch LB_g\nLB_gend:")
TS()
A(f"s_waitcnt lgkmcnt(0)\ns_barrier")
TS()
A("s_mov_b32 s32, s33\ns_branch LB_batch")
A(f"""LB_mfma:
s_cmp_ge_u32 s3, 14
s_cbranch_scc1 LB_end
s_lshr_b32 s28, s3, 1
s_lshl_b32 s28, s28, 5
v_add_u32 v16, s28, v10
s_mul_i32 s29, s2, {NB}
v_add_u32 v17, s29, v16
v_lshlrev_b32 v17, 7, v17
v_lshl_add_u32 v18, v11, 4, v17""")
A("s_waitcnt vmcnt(0)")
for i in range(32): A(f"v_lshl_or_b32 v{64+i}, v{96+i}, 16, v{64+i}")
for s in range(4): A(f"buffer_load_dwordx4 v[{96+4*s}:{99+4*s}], v18, s[8:11], 0 offen offset:{32*s}")
A(f"v_min_u32 v19, {NB-1}, v16\nv_lshlrev_b32 v19, 8, v19\nv_lshl_add_u32 v19, v11, 5, v19\nv_add_u32 v19, {ACC}, v19")
for s_ in range(4):
    A(f"ds_read_b128 v[{24+8*s_}:{27+8*s_}], v19 offset:{64*s_}\nds_read_b128 v[{28+8*s_}:{31+8*s_}], v19 offset:{64*s_+16}")
A("s_waitcnt lgkmcnt(0)")
for s_ in range(4):
    for q in range(4): A(f"v_cvt_pk_bf16_f32 v{112+4*s_+q}, v{24+8*s_+2*q}, v{25+8*s_+2*q}")
for i in range(16): A(f"v_mov_b32 v{24+i}, 0")
A("s_waitcnt vmcnt(0)\ns_nop 1")
for s in range(8):
    A(f"v_mfma_f32_32x32x16_bf16 v[24:39], v[{64+4*s}:{67+4*s}], v[{96+4*s}:{99+4*s}], v[24:39]")
A("s_nop 15\ns_nop 3")
A(f"v_cmp_gt_u32 vcc, {NB}, v16\ns_and_b64 exec, exec, vcc\ns_and_b32 s28, s3, 1\ns_lshl_b32 s28, s28, 6\nv_lshl_add_u32 v18, v11, 3, v17\nv_add_u32 v18, s28, v18")
for q in range(4):
    A(f"v_cvt_pk_bf16_f32 v{40+2*q}, v{24+4*q}, v{25+4*q}\nv_cvt_pk_bf16_f32 v{41+2*q}, v{26+4*q}, v{27+4*q}")
    A(f"buffer_store_dwordx2 v[{40+2*q}:{41+2*q}], v18, s[16:19], 0 offen offset:{16*q}")

TS=_TS
A("LB_end:\ns_endpgm")
A('.section .rodata,"a"')
for name,vg in (("cheb_a_kernel",80),("cheb_b_kernel",128)):
    A(f""".p2align 6
.amdhsa_kernel {name}
  .amdhsa_next_free_vgpr {vg}
  .amdhsa_next_free_sgpr 100
  .amdhsa_accum_offset {vg}
  .amdhsa_group_segment_fixed_size 0
  .amdhsa_kernarg_size 64
  .amdhsa_user_sgpr_count 2
  .amdhsa_user_sgpr_kernarg_segment_ptr 1
  .amdhsa_system_sgpr_workgroup_id_x 1
.end_amdhsa_kernel""")
open('prof.s' if PROF else 'standalone__spectral_conv_chebnet__graph.s','w').write('\n'.join(o)+'\n')
```
